```python
import torch

def _softmax(x, axis=-1):
    return torch.softmax(x, dim=axis)
def _gelu(x):
    return torch.nn.functional.gelu(x, approximate="tanh")
def _silu(x):
    return torch.nn.functional.silu(x)
def _sigmoid(x):
    return torch.sigmoid(x)
def _layernorm(x, axis=-1, eps=1e-5):
    m = x.mean(dim=axis, keepdim=True)
    v = x.var(dim=axis, keepdim=True, unbiased=False)
    return (x - m) / torch.sqrt(v + eps)
def _scatter_add(tgt, idx, src, axis=0):
    return tgt.clone().index_add_(axis, idx, src)
def _segment_sum(src, seg, n):
    out = torch.zeros((n,) + src.shape[1:], dtype=src.dtype)
    return out.index_add_(0, seg, src)
def _pad(x, pw):
    flat = tuple(v for pair in reversed(pw) for v in pair)
    return torch.nn.functional.pad(x, flat)

kernel_name = 'concat_heads__ssm_conv_s4__grouped_kv_mqa__prompt'

def setup_inputs():

    _w = (lambda a: (lambda t: t.to(torch.bfloat16) if t.is_floating_point() else t)(torch.as_tensor(a)))
    def _A_setup():
        B, L, D, N = 1, 2048, 640, 128
        A_re = -(lambda _x: torch.exp(torch.as_tensor(_x)))((lambda *s: torch.randn(*s, dtype=torch.bfloat16) * 6.4)(D, N))
        A_im = torch.pi * (lambda *s: torch.randn(*s, dtype=torch.bfloat16) * 0.1)(D, N)
        B_re = (lambda *s: torch.randn(*s, dtype=torch.bfloat16) * 0.1)(D, N)
        B_im = (lambda *s: torch.randn(*s, dtype=torch.bfloat16) * 0.1)(D, N)
        C_re = (lambda *s: torch.randn(*s, dtype=torch.bfloat16) * 0.1)(D, N)
        C_im = (lambda *s: torch.randn(*s, dtype=torch.bfloat16) * 0.1)(D, N)
        log_dt = (lambda *s: torch.randn(*s, dtype=torch.bfloat16) * 0.1)(D) * 0.5 - 4.0
        Dskip = (lambda *s: torch.randn(*s, dtype=torch.bfloat16) * 0.1)(D)
        return {
            "u": _w((lambda *s: torch.randn(*s, dtype=torch.bfloat16) * 0.05)(B, L, D)),
            "A_re": _w(A_re),
            "A_im": _w(A_im),
            "B_re": _w(B_re),
            "B_im": _w(B_im),
            "C_re": _w(C_re),
            "C_im": _w(C_im),
            "log_dt": _w(log_dt),
            "Dskip": _w(Dskip),
        }
    _A_in = _A_setup()

    def _B_setup():
        B, S, D, H = 1, 2048, 640, 32
        Dh = D // H
        return {
            "x": _w((lambda *s: torch.randn(*s, dtype=torch.bfloat16) * 0.05)(B, S, D)),
            "wq": _w((lambda *s: torch.randn(*s, dtype=torch.bfloat16) * 0.8)(D, H * Dh)),
            "wk": _w((lambda *s: torch.randn(*s, dtype=torch.bfloat16) * 0.8)(D, Dh)),
            "wv": _w((lambda *s: torch.randn(*s, dtype=torch.bfloat16) * 0.05)(D, Dh)),
            "wo": _w((lambda *s: torch.randn(*s, dtype=torch.bfloat16) * 0.05)(H * Dh, D)),
        }
    _B_in = _B_setup()

    return {
        "A_u": _A_in["u"],
        "A_A_re": _A_in["A_re"],
        "A_A_im": _A_in["A_im"],
        "A_B_re": _A_in["B_re"],
        "A_B_im": _A_in["B_im"],
        "A_C_re": _A_in["C_re"],
        "A_C_im": _A_in["C_im"],
        "A_log_dt": _A_in["log_dt"],
        "A_Dskip": _A_in["Dskip"],
        "B_x": _B_in["x"],
        "B_wq": _B_in["wq"],
        "B_wk": _B_in["wk"],
        "B_wv": _B_in["wv"],
        "B_wo": _B_in["wo"],
    }

def reference(A_u, A_A_re, A_A_im, A_B_re, A_B_im, A_C_re, A_C_im, A_log_dt, A_Dskip, B_x, B_wq, B_wk, B_wv, B_wo):
    def _A_ref(u, A_re, A_im, B_re, B_im, C_re, C_im, log_dt, Dskip):
        Bsz, L, D = u.shape
        dt = torch.exp(log_dt)[:, None]
        A = A_re + 1j * A_im
        Bc = B_re + 1j * B_im
        Cc = C_re + 1j * C_im
        logdA = dt * A
        dB = dt * Bc
        l = (lambda x, dt: x.to(dt))(torch.arange(L), A_re.dtype)
        P = torch.exp(logdA[:, :, None] * l[None, None, :])
        K = torch.einsum("dn,dnl,dn->dl", Cc, P, dB).real
        L2 = 2 * L
        Kp = _pad(K, ((0, 0), (0, L)))
        up = (lambda x, *d: x.permute(*d))(u, 0, 2, 1)
        up = _pad(up, ((0, 0), (0, 0), (0, L)))
        Kf = (lambda x, axes=(-2,-1): torch.fft.rfft2(x.float(), dim=axes))(Kp[:, None, :], axes=(-2, -1))
        Uf = (lambda x, axes=(-2,-1): torch.fft.rfft2(x.float(), dim=axes))(up[:, :, None, :], axes=(-2, -1))
        Yf = Uf * Kf[None, :, :, :]
        y = (lambda x, s, axes=(-2,-1): torch.fft.irfft2(x, s=s, dim=axes).to(torch.bfloat16))(Yf, (1, L2), axes=(-2, -1))[:, :, 0, :L]
        y = (lambda x, *d: x.permute(*d))(y, 0, 2, 1) + u * Dskip[None, None, :]
        return y

    def _B_ref(x, wq, wk, wv, wo):
        B, S, D = x.shape
        H = 32
        Dh = D // H
        q = (lambda x, *d: x.permute(*d))((x @ wq).reshape(B, S, H, Dh), 0, 2, 1, 3)
        k = x @ wk
        v = x @ wv
        scores = torch.einsum("bhqd,bkd->bhqk", q, k) * (Dh ** -0.5)
        p = _softmax(scores, axis=-1)
        o = torch.einsum("bhqk,bkd->bhqd", p, v)
        return (lambda x, *d: x.permute(*d))(o, 0, 2, 1, 3).reshape(B, S, H * Dh) @ wo

    a = _A_ref(A_u, A_A_re, A_A_im, A_B_re, A_B_im, A_C_re, A_C_im, A_log_dt, A_Dskip)
    b = _B_ref(B_x, B_wq, B_wk, B_wv, B_wo)
    return torch.concatenate([a, b], axis=-1)
```

```python
class Asm:
    def __init__(self):
        self.L = []
        self.uid = 0
    def e(self, s):
        for ln in s.split("\n"):
            ln = ln.strip()
            if ln: self.L.append("  " + ln)
    def c(self, s):
        self.L.append("  ; " + s)
    def lab(self, name):
        self.L.append(name + ":")
    def newlab(self, base):
        self.uid += 1
        return f"L_{base}_{self.uid}"
    def nop(self, n):
        while n > 0:
            k = min(n, 16)
            self.e(f"s_nop {k-1}")
            n -= k
    def text(self):
        return "\n".join(self.L) + "\n"
def v(a, n=1):
    return f"v{a}" if n == 1 else f"v[{a}:{a+n-1}]"
def s(a, n=1):
    return f"s{a}" if n == 1 else f"s[{a}:{a+n-1}]"
```

```python
from asmlib import *
KNAME = "concat_heads__ssm_conv_s4__grouped_kv_mqa__prompt"
KA = dict(u=0, Are=8, Aim=16, Bre=24, Bim=32, Cre=40, Cim=48, ldt=56, Dskip=64, x=72, wq=80, wk=88, wv=96,
          wo=104, out=112, dbg=120, ws=128)
WS_KV = 0
WS_UT = 0x40000
WS_YT = 0x2C0000
WS_O  = 0x540000
WS_SIZE = 0x7D0000
XSIZE = 2048 * 640 * 2
WSIZE = 640 * 640 * 2
WKVSIZE = 640 * 20 * 2
PSIZE = 640 * 128 * 2
OUTSIZE = 2048 * 1280 * 2
SRD3 = 0x20000
LDS_BYTES = 81920
SPIN_MAX = 40000
def DBG_B1(sh): return 64 * sh
DBG_KMAX = 4
def f32bits(x):
    import struct
    return struct.unpack("<I", struct.pack("<f", x))[0]
def hexf(x): return "0x%08x" % f32bits(x)

def srd(a, sreg, ka_name, size):
    a.e(f"s_load_dwordx2 {s(sreg,2)}, s[0:1], {KA[ka_name]}")
def srd_fin(a, sreg, size):
    a.e(f"s_mov_b32 {s(sreg+2)}, {size}")
    a.e(f"s_mov_b32 {s(sreg+3)}, 0x20000")

def poll_counter(a, dbg_srd, vaddr, vtmp, target, lanes_mask, scnt, smask, name, sleep=1):
    L = a.newlab("poll_" + name); Lo = a.newlab("pollout_" + name)
    a.e(f"s_mov_b32 {s(scnt)}, 0")
    a.lab(L)
    a.e(f"buffer_load_dword {v(vtmp)}, {v(vaddr)}, {s(dbg_srd,4)}, 0 offen sc1")
    a.e(f"s_add_u32 {s(scnt)}, {s(scnt)}, 1")
    a.e("s_waitcnt vmcnt(0)")
    if isinstance(target, int):
        a.e(f"v_cmp_ne_u32 {s(smask,2)}, {v(vtmp)}, {target}" if target <= 64 else f"v_cmp_ne_u32 vcc, {target}, {v(vtmp)}")
    else:
        a.e(f"v_cmp_ne_u32 {s(smask,2)}, {v(vtmp)}, {target}")
    if isinstance(target, int) and target > 64:
        a.e("s_nop 1")
        a.e(f"s_mov_b64 {s(smask,2)}, vcc")
    a.nop(2)
    a.e(f"s_and_b32 {s(smask)}, {s(smask)}, {lanes_mask}")
    a.e(f"s_cbranch_scc0 {Lo}")
    a.e(f"s_cmp_gt_u32 {s(scnt)}, {SPIN_MAX}")
    a.e(f"s_cbranch_scc1 {Lo}")
    if sleep: a.e(f"s_sleep {sleep}")
    a.e(f"s_branch {L}")
    a.lab(Lo)

PROF = False
WS_PROF = 0x7C0000
PROF_S0 = 60
def stamp(a, i, cyc=False):
    import common
    if not common.PROF: return
    a.e(f"{'s_memtime' if cyc else 's_memrealtime'} {s(PROF_S0+2*i,2)}")
    a.e("s_waitcnt lgkmcnt(0)")
def stamp_flush(a, n, ws_srd, swave, vt0, vt1):
    import common
    if not common.PROF: return
    L = a.newlab("noprof")
    a.e(f"s_cmp_lg_u32 {s(swave)}, 0")
    a.e(f"s_cbranch_scc1 {L}")
    a.e(f"s_lshl_b32 s59, s2, 7")
    a.e(f"s_add_u32 s59, s59, {WS_PROF}")
    a.e(f"v_mov_b32 {v(vt0)}, 0")
    for i in range(n):
        a.e(f"v_mov_b32 {v(vt1)}, {s(PROF_S0+2*i)}")
        a.e(f"buffer_store_dword {v(vt1)}, {v(vt0)}, {s(ws_srd,4)}, s59 offen offset:{4*i}")
        a.e("s_nop 1")
    a.e("s_waitcnt vmcnt(0)")
    a.lab(L)
```

```python
from common import *
import common
import math
sW, sC, sM, sV, sT = 3, 4, 5, 6, 7
SX, SWQ, SWS, SDBG = 8, 12, 16, 20
sQB, sJ, sGH, sNT = 24, 25, 26, 27
sMX, sMW, sCX, sCW = 28, 29, 30, 31
sT2, sT3 = 32, 33
sPM = 34
sPC = 36
sChunk, sSlotN, sSlotD, sMKV, sKVoff = 37, 38, 39, 40, 41
sRetry = 42
sEx = 44
vL = 0
vX0, vX1, vW0, vW1, vW2 = 2, 3, 4, 5, 6
vPF = 7
vXA = 8
vWA = 16
vO = 16
vS0, vS1 = 32, 48
vP = 64
vQ1, vQ2 = 72, 76
KV = [dict(K1=80, V1=84, V2=88, K2=92), dict(K1=94, V1=98, V2=102, K2=106)]
aK1c, aK1n, aK2c, aK2n, aVc, aVn = 108, 109, 110, 111, 112, 113
vDMA = 114
vN2 = 115
vT0, vT1, vT2, vT3 = 116, 117, 118, 119
vLK1, vLK2, vLV = 120, 121, 122
vZ = 123
QBUF = 36864
CHUNK = 24576
LDS_FLAGS = 73728
OROW = 176

def ids(a):
    a.e(f"s_and_b32 {s(sW)}, s2, 255")
    srd(a, SX, "x", 0); srd(a, SWQ, "wq", 0); srd(a, SWS, "ws", 0); srd(a, SDBG, "dbg", 0)
    a.e(f"v_lshrrev_b32 v1, 6, v0")
    a.e(f"s_and_b32 {s(sC)}, {s(sW)}, 7")
    a.e(f"s_lshr_b32 {s(sM)}, {s(sW)}, 3")
    a.e(f"v_readfirstlane_b32 {s(sV)}, v1")
    a.e(f"v_and_b32 v0, 63, v0")
    a.e(f"s_lshr_b32 {s(sT)}, {s(sM)}, 3")
    a.e(f"s_lshl_b32 {s(sT)}, {s(sT)}, 3")
    a.e(f"s_add_u32 {s(sQB)}, {s(sT)}, {s(sC)}")
    a.e(f"s_and_b32 {s(sJ)}, {s(sM)}, 7")
    a.e(f"s_and_b32 {s(sGH)}, {s(sV)}, 3")
    a.e(f"s_lshr_b32 {s(sNT)}, {s(sV)}, 2")
    for r, sz in ((SX, XSIZE), (SWQ, WSIZE), (SWS, WS_SIZE), (SDBG, 256)):
        srd_fin(a, r, sz)

def qproj_dma(a, c, buf):
    a.e(f"s_mov_b32 {s(sCX)}, {c*256}")
    a.e(f"s_mov_b32 {s(sCW)}, {c*163840}")
    b = buf * QBUF
    a.e(f"s_add_u32 m0, {s(sMX)}, {b}")
    a.e("s_nop 0")
    a.e(f"buffer_load_dwordx4 {v(vX0)}, {s(SX,4)}, {s(sCX)} offen lds")
    a.e(f"s_add_u32 m0, {s(sMX)}, {b+1024}")
    a.e("s_nop 0")
    a.e(f"buffer_load_dwordx4 {v(vX1)}, {s(SX,4)}, {s(sCX)} offen lds")
    a.e(f"s_add_u32 m0, {s(sMW)}, {b}")
    a.e("s_nop 0")
    a.e(f"buffer_load_dwordx4 {v(vW0)}, {s(SWQ,4)}, {s(sCW)} offen lds")
    a.e(f"s_add_u32 m0, {s(sMW)}, {b+1024}")
    a.e("s_nop 0")
    a.e(f"buffer_load_dwordx4 {v(vW1)}, {s(SWQ,4)}, {s(sCW)} offen lds")
    a.e(f"s_add_u32 m0, {s(sMW)}, {b+2048}")
    a.e("s_mov_b32 exec_hi, 0")
    a.e(f"buffer_load_dwordx4 {v(vW2)}, {s(SWQ,4)}, {s(sCW)} offen lds")
    a.e("s_mov_b32 exec_hi, -1")

def qproj(a):
    a.c("==== A: q projection ====")
    a.e(f"v_lshrrev_b32 v20, 4, v0")
    a.e(f"v_and_b32 v21, 15, v0")
    a.e(f"s_and_b32 {s(sT)}, {s(sV)}, 1")
    a.e(f"s_lshl_b32 {s(sT)}, {s(sT)}, 3")
    a.e(f"v_add_u32 v22, {s(sT)}, v20")
    a.e(f"v_mul_u32_u24 v23, 1280, v20")
    a.e(f"s_lshl_b32 {s(sT2)}, {s(sQB)}, 3")
    a.e(f"s_add_u32 {s(sT2)}, {s(sT2)}, {s(sV)}")
    a.e(f"s_mul_i32 {s(sT2)}, {s(sT2)}, {8*1280}")
    a.e(f"v_xor_b32 v24, v21, v22")
    a.e(f"v_lshl_add_u32 v24, v24, 4, v23")
    a.e(f"v_add_u32 {v(vX0)}, {s(sT2)}, v24")
    a.e(f"v_add_u32 v22, 4, v22")
    a.e(f"v_xor_b32 v24, v21, v22")
    a.e(f"v_lshl_add_u32 v24, v24, 4, v23")
    a.e(f"s_add_u32 {s(sT2)}, {s(sT2)}, 5120")
    a.e(f"v_add_u32 {v(vX1)}, {s(sT2)}, v24")
    a.e(f"s_mul_i32 {s(sT2)}, {s(sV)}, 20480")
    a.e(f"s_mul_i32 {s(sT3)}, {s(sJ)}, 160")
    a.e(f"s_add_u32 {s(sT2)}, {s(sT2)}, {s(sT3)}")
    for i, r in enumerate((vW0, vW1, vW2)):
        a.e(f"v_add_u32 v20, {64*i}, v0")
        a.e(f"v_mul_u32_u24 v21, 6554, v20")
        a.e(f"v_lshrrev_b32 v21, 16, v21")
        a.e(f"v_mul_u32_u24 v21, 1120, v21")
        a.e(f"v_lshl_add_u32 v21, v20, 4, v21")
        a.e(f"v_add_u32 {v(r)}, {s(sT2)}, v21")
    a.e(f"s_lshl_b32 {s(sMX)}, {s(sV)}, 11")
    a.e(f"s_mul_i32 {s(sMW)}, {s(sV)}, 2560")
    a.e(f"s_add_u32 {s(sMW)}, {s(sMW)}, 16384")
    a.e("s_waitcnt lgkmcnt(0)")
    qproj_dma(a, 0, 0)
    qproj_dma(a, 1, 1)
    Lw = a.newlab("pfw"); Ld = a.newlab("pfd")
    a.e(f"s_cmp_lt_u32 {s(sV)}, 2")
    a.e(f"s_cbranch_scc0 {Lw}")
    a.e(f"s_lshl_b32 {s(sT)}, {s(sV)}, 6")
    a.e(f"v_add_u32 v20, {s(sT)}, v0")
    a.e(f"v_min_u32 v20, 95, v20")
    a.e(f"v_mul_u32_u24 v21, 5462, v20")
    a.e(f"v_lshrrev_b32 v21, 16, v21")
    a.e(f"v_mul_u32_u24 v22, 12, v21")
    a.e(f"v_sub_u32 v22, v20, v22")
    a.e(f"v_mul_u32_u24 v21, 1280, v21")
    a.e(f"v_lshl_add_u32 v21, v22, 6, v21")
    a.e(f"s_lshl_b32 {s(sT2)}, {s(sQB)}, 3")
    a.e(f"s_add_u32 {s(sT2)}, {s(sT2)}, {s(sJ)}")
    a.e(f"s_mul_i32 {s(sT2)}, {s(sT2)}, {8*1280}")
    a.e(f"s_add_u32 {s(sT2)}, {s(sT2)}, 512")
    a.e(f"v_add_u32 v21, {s(sT2)}, v21")
    a.e(f"buffer_load_dword {v(vPF)}, v21, {s(SX,4)}, 0 offen")
    a.e(f"s_branch {Ld}")
    a.lab(Lw)
    a.e(f"s_sub_u32 {s(sT)}, {s(sV)}, 2")
    a.e(f"s_lshl_b32 {s(sT)}, {s(sT)}, 6")
    a.e(f"v_add_u32 v20, {s(sT)}, v0")
    a.e(f"v_min_u32 v20, 287, v20")
    a.e(f"v_mul_u32_u24 v21, 21846, v20")
    a.e(f"v_lshrrev_b32 v21, 16, v21")
    a.e(f"v_mul_u32_u24 v22, 3, v21")
    a.e(f"v_sub_u32 v22, v20, v22")
    a.e(f"v_mul_u32_u24 v21, 1280, v21")
    a.e(f"v_lshl_add_u32 v21, v22, 6, v21")
    a.e(f"s_lshr_b32 {s(sT2)}, {s(sQB)}, 3")
    a.e(f"s_mul_i32 {s(sT2)}, {s(sT2)}, 96")
    a.e(f"s_add_u32 {s(sT2)}, {s(sT2)}, 256")
    a.e(f"s_mul_i32 {s(sT2)}, {s(sT2)}, 1280")
    a.e(f"s_mul_i32 {s(sT3)}, {s(sJ)}, 160")
    a.e(f"s_and_b32 {s(sT3)}, {s(sT3)}, 0xffffffc0")
    a.e(f"s_add_u32 {s(sT2)}, {s(sT2)}, {s(sT3)}")
    a.e(f"v_add_u32 v21, {s(sT2)}, v21")
    a.e(f"buffer_load_dword {v(vPF)}, v21, {s(SWQ,4)}, 0 offen")
    a.lab(Ld)
    a.e(f"v_and_b32 v20, 31, v0")
    a.e(f"s_lshl_b32 {s(sT)}, {s(sNT)}, 5")
    a.e(f"v_add_u32 v20, {s(sT)}, v20")
    a.e(f"v_lshlrev_b32 v20, 8, v20")
    a.e(f"v_lshrrev_b32 v21, 5, v0")
    a.e(f"v_and_b32 v22, 15, v0")
    a.e(f"v_xor_b32 v21, v21, v22")
    for k in range(8):
        a.e(f"v_xor_b32 v22, {2*k}, v21")
        a.e(f"v_lshl_add_u32 {v(vXA+k)}, v22, 4, v20")
    a.e(f"v_lshrrev_b32 v20, 5, v0")
    a.e(f"v_lshlrev_b32 v20, 3, v20")
    a.e(f"v_lshrrev_b32 v21, 2, v0")
    a.e(f"v_and_b32 v21, 3, v21")
    a.e(f"v_add_u32 v20, v20, v21")
    a.e(f"v_mul_u32_u24 v20, 160, v20")
    a.e(f"v_bfe_u32 v21, v0, 4, 1")
    a.e(f"v_lshl_add_u32 v20, v21, 5, v20")
    a.e(f"v_and_b32 v21, 3, v0")
    a.e(f"v_lshl_add_u32 v20, v21, 3, v20")
    a.e(f"s_mul_i32 {s(sT)}, {s(sGH)}, 40")
    a.e(f"s_add_u32 {s(sT)}, {s(sT)}, 16384")
    a.e(f"v_add_u32 {v(vWA)}, {s(sT)}, v20")
    FA = [48, 56]; FB = [52, 60]
    acc = vS0
    def reads(ks, buf, st):
        b = buf * QBUF
        a.e(f"ds_read_b64_tr_b16 {v(FA[st],2)}, {v(vWA)} offset:{b + ks*2560}")
        a.e(f"ds_read_b64_tr_b16 {v(FA[st]+2,2)}, {v(vWA)} offset:{b + ks*2560 + 640}")
        a.e(f"ds_read_b128 {v(FB[st],4)}, {v(vXA+ks)} offset:{b}")
    a.e("s_waitcnt vmcnt(6)")
    a.e("s_barrier")
    stamp(a, 1)
    for c in range(5):
        buf = c % 2
        reads(0, buf, 0)
        for ks in range(8):
            st = ks % 2
            if ks < 7:
                reads(ks + 1, buf, 1 - st)
                a.e("s_waitcnt lgkmcnt(3)")
            else:
                a.e("s_waitcnt lgkmcnt(0)")
            cin = "0" if (c == 0 and ks == 0) else v(acc, 16)
            a.e(f"v_mfma_f32_32x32x16_bf16 {v(acc,16)}, {v(FA[st],4)}, {v(FB[st],4)}, {cin}")
        if c < 4:
            if c == 0:
                a.e("s_waitcnt vmcnt(1)")
            else:
                a.e("s_waitcnt vmcnt(0)")
            a.e("s_barrier")
            if c + 2 < 5:
                qproj_dma(a, c + 2, buf)
    a.nop(12)
    cs = math.log2(math.e) / math.sqrt(20.0)
    a.e(f"s_mov_b32 {s(sT)}, {hexf(cs)}")
    for r in range(12):
        a.e(f"v_mul_f32 {v(acc+r)}, {s(sT)}, {v(acc+r)}")
    a.e("s_mov_b32 exec_lo, 0")
    for r in range(8, 12):
        a.e(f"v_mov_b32 {v(acc+r)}, 0")
    a.e("s_mov_b32 exec_lo, -1")
    a.e(f"v_mul_f32 {v(vN2)}, {v(acc)}, {v(acc)}")
    for r in range(1, 12):
        a.e(f"v_fmac_f32 {v(vN2)}, {v(acc+r)}, {v(acc+r)}")
    for i in range(4):
        a.e(f"v_cvt_pk_bf16_f32 {v(vQ1+i)}, {v(acc+2*i)}, {v(acc+2*i+1)}")
    for i in range(2):
        a.e(f"v_cvt_pk_bf16_f32 {v(vQ2+i)}, {v(acc+8+2*i)}, {v(acc+9+2*i)}")
    a.e(f"v_mov_b32 {v(vT0)}, {v(vN2)}")
    a.nop(2)
    a.e(f"v_permlane32_swap_b32 {v(vN2)}, {v(vT0)}")
    a.nop(1)
    a.e(f"v_add_f32 {v(vN2)}, {v(vN2)}, {v(vT0)}")

def kv_dma(a, chunk_sreg, slot_sreg):
    a.e(f"s_add_u32 m0, {s(slot_sreg)}, {s(sMKV)}")
    a.e("s_nop 0")
    for i in range(3):
        a.e(f"buffer_load_dwordx4 {v(vDMA)}, {s(SWS,4)}, {s(chunk_sreg)} offen offset:{i*1024} sc1 lds")

def wait_b1(a):
    a.c("==== A: wait for K/V ====")
    Ls = a.newlab("nopoll")
    a.e(f"s_cmp_lg_u32 {s(sV)}, 0")
    a.e(f"s_cbranch_scc1 {Ls}")
    a.e(f"v_and_b32 {v(vT0)}, 3, v0")
    a.e(f"v_lshlrev_b32 {v(vT0)}, 6, {v(vT0)}")
    poll_counter(a, SDBG, vT0, vT1, 16, 0xf, sPC, sPM, "b1")
    a.lab(Ls)
    a.e("s_barrier")

def tile(a, jj, mode="main"):
    Sa = vS0 if jj % 2 == 0 else vS1
    Sb = vS1 if jj % 2 == 0 else vS0
    cur = KV[jj % 2]; nx = KV[(jj + 1) % 2]
    def G(i0):
        for i in range(i0, i0 + 4):
            a.e(f"v_exp_f32 {v(Sa+i)}, {v(Sa+i)}")
        a.e(f"v_cvt_pk_bf16_f32 {v(vP+i0//2)}, {v(Sa+i0)}, {v(Sa+i0+1)}")
        a.e(f"v_cvt_pk_bf16_f32 {v(vP+i0//2+1)}, {v(Sa+i0+2)}, {v(Sa+i0+3)}")
    def addr(cn, nn, blk):
        return (cn, blk * 3072) if blk < 8 else (nn, (blk - 8) * 3072)
    if jj == 6:
        a.e("s_waitcnt vmcnt(0) lgkmcnt(0)")
        a.e("s_barrier")
        Lsk = a.newlab("nodma")
        a.e(f"s_cmp_ge_u32 {s(sChunk)}, 6")
        a.e(f"s_cbranch_scc1 {Lsk}")
        a.e(f"s_add_u32 {s(sT)}, {s(sChunk)}, 2")
        a.e(f"s_mul_i32 {s(sT)}, {s(sT)}, {CHUNK}")
        kv_dma(a, sT, sSlotD)
        a.lab(Lsk)
    else:
        a.e("s_waitcnt lgkmcnt(0)")
    a.e(f"v_mfma_f32_32x32x16_bf16 {v(Sb,16)}, {v(cur['K1'],4)}, {v(vQ1,4)}, 0")
    r, o = addr(aK1c, aK1n, jj + 2)
    a.e(f"ds_read_b128 {v(nx['K1'],4)}, {v(r)} offset:{o}")
    r, o = addr(aK2c, aK2n, jj + 2)
    a.e(f"ds_read_b64 {v(nx['K2'],2)}, {v(r)} offset:{o}")
    G(0)
    a.e(f"v_mfma_f32_32x32x16_bf16 {v(vO,16)}, {v(cur['V2'],4)}, {v(vP+4,4)}, {v(vO,16)}")
    a.e(f"ds_read_b128 {v(nx['V2'],4)}, {v(aVc)} offset:{jj*3072 + 768}")
    r, o = addr(aVc, aVn, jj + 1)
    a.e(f"ds_read_b128 {v(nx['V1'],4)}, {v(r)} offset:{o}")
    G(4)
    a.e(f"v_mfma_f32_32x32x8_bf16 {v(Sb,16)}, {v(cur['K2'],2)}, {v(vQ2,2)}, {v(Sb,16)}")
    G(8)
    a.e(f"v_mfma_f32_32x32x16_bf16 {v(vO,16)}, {v(cur['V1'],4)}, {v(vP,4)}, {v(vO,16)}")
    G(12)

def attention(a, warm=True):
    a.c("==== A: attention ====")
    Lstart = a.newlab("attn_start")
    a.e(f"v_lshlrev_b32 {v(vLK1)}, 4, v0")
    a.e(f"v_lshlrev_b32 {v(vLK2)}, 3, v0")
    a.e(f"v_add_u32 {v(vLK2)}, 1024, {v(vLK2)}")
    a.e(f"v_and_b32 {v(vT0)}, 31, v0")
    a.e(f"v_min_u32 {v(vT0)}, 23, {v(vT0)}")
    a.e(f"v_lshrrev_b32 {v(vT1)}, 5, v0")
    a.e(f"v_mul_u32_u24 {v(vT1)}, 24, {v(vT1)}")
    a.e(f"v_add_u32 {v(vT0)}, {v(vT0)}, {v(vT1)}")
    a.e(f"v_lshlrev_b32 {v(vLV)}, 4, {v(vT0)}")
    a.e(f"v_add_u32 {v(vLV)}, 1536, {v(vLV)}")
    a.e(f"s_mul_i32 {s(sMKV)}, {s(sV)}, 3072")
    a.e(f"v_lshlrev_b32 {v(vDMA)}, 4, v0")
    a.e(f"v_add_u32 {v(vDMA)}, {s(sMKV)}, {v(vDMA)}")
    if WS_KV: a.e(f"v_add_u32 {v(vDMA)}, {WS_KV}, {v(vDMA)}")
    a.e(f"v_mov_b32 {v(vZ)}, 0")
    a.e(f"s_mov_b32 {s(sRetry)}, 0")
    a.e(f"buffer_load_dword {v(vT3)}, {v(vZ)}, {s(SDBG,4)}, 0 offen offset:{DBG_KMAX} sc1")
    a.lab(Lstart)
    a.e(f"s_mov_b32 {s(sT2)}, 0")
    a.e(f"s_mov_b32 {s(sT3)}, {CHUNK}")
    kv_dma(a, sT2, sT2)
    kv_dma(a, sT3, sT3)
    Lnom = a.newlab("nom")
    a.e(f"s_cmp_lg_u32 {s(sRetry)}, 0")
    a.e(f"s_cbranch_scc1 {Lnom}")
    a.e("s_waitcnt vmcnt(6)")
    a.e(f"v_mul_f32 {v(vT0)}, {v(vN2)}, {v(vT3)}")
    a.e(f"v_sqrt_f32 {v(vT0)}, {v(vT0)}")
    a.e(f"s_mov_b32 {s(sT)}, {hexf(1.02)}")
    a.nop(1)
    a.e(f"v_mul_f32 {v(vT0)}, {s(sT)}, {v(vT0)}")
    a.e(f"v_cvt_pk_bf16_f32 {v(vT1)}, -{v(vT0)}, 0")
    a.e("s_mov_b32 exec_lo, 0")
    a.e(f"v_mov_b32 {v(vQ2)}, {v(vT1)}")
    a.e("s_mov_b32 exec_lo, -1")
    a.lab(Lnom)
    for r in range(16):
        a.e(f"v_mov_b32 {v(vO+r)}, 0")
    for r in range(4, 8):
        a.e(f"v_mov_b32 {v(vP+r)}, 0")
    a.e(f"v_mov_b32 {v(aK1c)}, {v(vLK1)}")
    a.e(f"v_mov_b32 {v(aK2c)}, {v(vLK2)}")
    a.e(f"v_mov_b32 {v(aVc)}, {v(vLV)}")
    a.e(f"v_add_u32 {v(aK1n)}, {CHUNK}, {v(vLK1)}")
    a.e(f"v_add_u32 {v(aK2n)}, {CHUNK}, {v(vLK2)}")
    a.e(f"v_add_u32 {v(aVn)}, {CHUNK}, {v(vLV)}")
    a.e(f"s_mov_b32 {s(sChunk)}, 0")
    a.e(f"s_mov_b32 {s(sSlotD)}, {2*CHUNK}")
    a.e("s_waitcnt vmcnt(3)")
    a.e("s_barrier")
    stamp(a, 4)
    stamp(a, 9, True)
    a.e(f"ds_read_b128 {v(KV[1]['K1'],4)}, {v(aK1c)}")
    a.e(f"ds_read_b64 {v(KV[1]['K2'],2)}, {v(aK2c)}")
    a.e(f"ds_read_b128 {v(KV[0]['K1'],4)}, {v(aK1c)} offset:3072")
    a.e(f"ds_read_b64 {v(KV[0]['K2'],2)}, {v(aK2c)} offset:3072")
    a.e(f"ds_read_b128 {v(KV[0]['V2'],4)}, {v(aVc)} offset:768")
    a.e(f"ds_read_b128 {v(KV[0]['V1'],4)}, {v(aVc)}")
    a.e("s_waitcnt lgkmcnt(4)")
    a.e(f"v_mfma_f32_32x32x16_bf16 {v(vS0,16)}, {v(KV[1]['K1'],4)}, {v(vQ1,4)}, 0")
    a.e(f"v_mfma_f32_32x32x8_bf16 {v(vS0,16)}, {v(KV[1]['K2'],2)}, {v(vQ2,2)}, {v(vS0,16)}")
    a.nop(12)
    Lloop = a.newlab("chunk")
    a.L.append(".p2align 6")
    a.lab(Lloop)
    for jj in range(8):
        tile(a, jj)
    a.e(f"v_mov_b32 {v(aK1c)}, {v(aK1n)}")
    a.e(f"v_mov_b32 {v(aK2c)}, {v(aK2n)}")
    a.e(f"v_mov_b32 {v(aVc)}, {v(aVn)}")
    a.e(f"v_add_u32 {v(aK1n)}, {s(sSlotD)}, {v(vLK1)}")
    a.e(f"v_add_u32 {v(aK2n)}, {s(sSlotD)}, {v(vLK2)}")
    a.e(f"v_add_u32 {v(aVn)}, {s(sSlotD)}, {v(vLV)}")
    a.e(f"s_add_u32 {s(sSlotD)}, {s(sSlotD)}, {CHUNK}")
    a.e(f"s_cmp_ge_u32 {s(sSlotD)}, {3*CHUNK}")
    a.e(f"s_cselect_b32 {s(sSlotD)}, 0, {s(sSlotD)}")
    a.e(f"s_add_u32 {s(sChunk)}, {s(sChunk)}, 1")
    a.e(f"s_cmp_lt_u32 {s(sChunk)}, 8")
    a.e(f"s_cbranch_scc1 {Lloop}")
    a.e("s_waitcnt lgkmcnt(0)")
    a.e(f"v_mfma_f32_32x32x16_bf16 {v(vO,16)}, {v(KV[0]['V2'],4)}, {v(vP+4,4)}, {v(vO,16)}")
    a.nop(12)
    a.e(f"v_mov_b32 {v(vT0)}, {v(vO+8)}")
    a.e(f"v_mov_b32 {v(vT1)}, {v(vO+8)}")
    a.nop(2)
    a.e(f"v_permlane32_swap_b32 {v(vT0)}, {v(vT1)}")
    a.nop(1)
    return Lstart

def safety_vote(a, Lstart):
    Lok = a.newlab("voteok")
    a.e(f"s_mov_b32 {s(sT)}, {hexf(2.0**-60)}")
    a.e(f"v_mov_b32 {v(vT2)}, {s(sT)}")
    a.e(f"v_cmp_nge_f32 vcc, {v(vT1)}, {v(vT2)}")
    a.nop(2)
    a.e(f"s_cmp_lg_u64 vcc, 0")
    a.e(f"s_cselect_b32 {s(sT)}, 1, 0")
    a.e(f"v_mov_b32 {v(vT2)}, {s(sT)}")
    a.e(f"s_lshl_b32 {s(sT2)}, {s(sV)}, 2")
    a.e(f"s_add_u32 {s(sT2)}, {s(sT2)}, {LDS_FLAGS}")
    a.e(f"v_mov_b32 {v(vT3)}, {s(sT2)}")
    a.e(f"ds_write_b32 {v(vT3)}, {v(vT2)}")
    a.e("s_waitcnt lgkmcnt(0)")
    a.e("s_barrier")
    a.e(f"v_and_b32 {v(vT3)}, 7, v0")
    a.e(f"v_lshlrev_b32 {v(vT3)}, 2, {v(vT3)}")
    a.e(f"v_add_u32 {v(vT3)}, {LDS_FLAGS}, {v(vT3)}")
    a.e(f"ds_read_b32 {v(vT2)}, {v(vT3)}")
    a.e("s_waitcnt lgkmcnt(0)")
    a.e(f"v_cmp_ne_u32 vcc, 0, {v(vT2)}")
    a.nop(2)
    a.e(f"s_cmp_eq_u64 vcc, 0")
    a.e(f"s_cbranch_scc1 {Lok}")
    a.e(f"s_cmp_lg_u32 {s(sRetry)}, 0")
    a.e(f"s_cbranch_scc1 {Lok}")
    maxpass(a, Lstart)
    a.lab(Lok)

def maxpass(a, Lstart):
    a.c("---- fallback: true max pass ----")
    a.e(f"s_mov_b32 {s(sRetry)}, 1")
    a.e("s_barrier")
    a.e("s_mov_b32 exec_lo, 0")
    a.e(f"v_mov_b32 {v(vQ2)}, 0")
    a.e("s_mov_b32 exec_lo, -1")
    a.e(f"v_mov_b32 {v(vT2)}, 0xff800000")
    a.e(f"s_mov_b32 {s(sChunk)}, 0")
    Lc = a.newlab("mp_chunk"); Lb = a.newlab("mp_blk")
    a.lab(Lc)
    a.e(f"s_mul_i32 {s(sT)}, {s(sChunk)}, {CHUNK}")
    a.e(f"s_mov_b32 {s(sT3)}, 0")
    kv_dma(a, sT, sT3)
    a.e("s_waitcnt vmcnt(0)")
    a.e("s_barrier")
    a.e(f"v_mov_b32 {v(aK1c)}, {v(vLK1)}")
    a.e(f"v_mov_b32 {v(aK2c)}, {v(vLK2)}")
    a.e(f"s_mov_b32 {s(sT2)}, 0")
    a.lab(Lb)
    a.e(f"ds_read_b128 {v(KV[0]['K1'],4)}, {v(aK1c)}")
    a.e(f"ds_read_b64 {v(KV[0]['K2'],2)}, {v(aK2c)}")
    a.e("s_waitcnt lgkmcnt(0)")
    a.e(f"v_mfma_f32_32x32x16_bf16 {v(vS0,16)}, {v(KV[0]['K1'],4)}, {v(vQ1,4)}, 0")
    a.e(f"v_mfma_f32_32x32x8_bf16 {v(vS0,16)}, {v(KV[0]['K2'],2)}, {v(vQ2,2)}, {v(vS0,16)}")
    a.nop(16)
    for r in range(0, 16, 2):
        a.e(f"v_max3_f32 {v(vT2)}, {v(vS0+r)}, {v(vS0+r+1)}, {v(vT2)}")
    a.e(f"v_add_u32 {v(aK1c)}, 3072, {v(aK1c)}")
    a.e(f"v_add_u32 {v(aK2c)}, 3072, {v(aK2c)}")
    a.e(f"s_add_u32 {s(sT2)}, {s(sT2)}, 1")
    a.e(f"s_cmp_lt_u32 {s(sT2)}, 8")
    a.e(f"s_cbranch_scc1 {Lb}")
    a.e("s_barrier")
    a.e(f"s_add_u32 {s(sChunk)}, {s(sChunk)}, 1")
    a.e(f"s_cmp_lt_u32 {s(sChunk)}, 8")
    a.e(f"s_cbranch_scc1 {Lc}")
    a.e(f"v_mov_b32 {v(vT3)}, {v(vT2)}")
    a.nop(2)
    a.e(f"v_permlane32_swap_b32 {v(vT2)}, {v(vT3)}")
    a.nop(1)
    a.e(f"v_max_f32 {v(vT2)}, {v(vT2)}, {v(vT3)}")
    a.e(f"v_cvt_pk_bf16_f32 {v(vT3)}, {v(vT2)}, 0")
    a.e(f"v_lshlrev_b32 {v(vT3)}, 16, {v(vT3)}")
    a.e(f"v_sub_f32 {v(vT2)}, {v(vT2)}, {v(vT3)}")
    a.e(f"v_cvt_pk_bf16_f32 {v(vT3)}, -{v(vT3)}, -{v(vT2)}")
    a.e("s_mov_b32 exec_lo, 0")
    a.e(f"v_mov_b32 {v(vQ2)}, {v(vT3)}")
    a.e("s_mov_b32 exec_lo, -1")
    a.e(f"s_branch {Lstart}")

def epilogue(a):
    a.c("==== A: normalise, publish o ====")
    a.e(f"v_rcp_f32 {v(vT1)}, {v(vT1)}")
    a.nop(1)
    for r in range(12):
        a.e(f"v_mul_f32 {v(vO+r)}, {v(vO+r)}, {v(vT1)}")
    for i in range(6):
        a.e(f"v_cvt_pk_bf16_f32 {v(vS0+i)}, {v(vO+2*i)}, {v(vO+2*i+1)}")
    a.e(f"v_and_b32 {v(vT0)}, 31, v0")
    a.e(f"s_lshl_b32 {s(sT)}, {s(sNT)}, 5")
    a.e(f"v_add_u32 {v(vT0)}, {s(sT)}, {v(vT0)}")
    a.e(f"v_mul_u32_u24 {v(vT0)}, {OROW}, {v(vT0)}")
    a.e(f"v_lshrrev_b32 {v(vT2)}, 5, v0")
    a.e(f"v_lshl_add_u32 {v(vT0)}, {v(vT2)}, 3, {v(vT0)}")
    a.e(f"s_mul_i32 {s(sT)}, {s(sGH)}, 40")
    a.e(f"v_add_u32 {v(vT0)}, {s(sT)}, {v(vT0)}")
    a.e(f"ds_write_b64 {v(vT0)}, {v(vS0,2)}")
    a.e(f"ds_write_b64 {v(vT0)}, {v(vS0+2,2)} offset:16")
    a.e("s_mov_b32 exec_hi, 0")
    a.e(f"ds_write_b64 {v(vT0)}, {v(vS0+4,2)} offset:32")
    a.e("s_mov_b32 exec_hi, -1")
    a.e("s_waitcnt lgkmcnt(0)")
    a.e("s_barrier")
    def piece(first):
        a.e(f"v_lshrrev_b32 {v(vT1)}, 6, {v(vT0)}")
        a.e(f"v_and_b32 {v(vT2)}, 63, {v(vT0)}")
        a.e(f"v_mul_u32_u24 {v(vT3)}, {OROW}, {v(vT2)}")
        a.e(f"v_lshl_add_u32 {v(vT3)}, {v(vT1)}, 4, {v(vT3)}")
        a.e(f"ds_read_b128 {v(vS1,4)}, {v(vT3)}")
        a.e(f"s_mul_i32 {s(sT)}, {s(sJ)}, 10")
        a.e(f"v_add_u32 {v(vT1)}, {s(sT)}, {v(vT1)}")
        a.e(f"v_lshlrev_b32 {v(vT1)}, 8, {v(vT1)}")
        a.e(f"v_lshrrev_b32 {v(vT3)}, 4, {v(vT2)}")
        a.e(f"v_mul_u32_u24 {v(vT3)}, 20480, {v(vT3)}")
        a.e(f"v_add_u32 {v(vT1)}, {v(vT1)}, {v(vT3)}")
        a.e(f"v_and_b32 {v(vT2)}, 15, {v(vT2)}")
        a.e(f"v_lshl_add_u32 {v(vT1)}, {v(vT2)}, 4, {v(vT1)}")
        a.e(f"s_mul_i32 {s(sT)}, {s(sQB)}, 81920")
        a.e(f"s_add_u32 {s(sT)}, {s(sT)}, {WS_O}")
        a.e("s_waitcnt lgkmcnt(0)")
        a.e(f"buffer_store_dwordx4 {v(vS1,4)}, {v(vT1)}, {s(SWS,4)}, {s(sT)} offen sc1")
    a.e(f"s_lshl_b32 {s(sT2)}, {s(sV)}, 6")
    a.e(f"v_add_u32 {v(vT0)}, {s(sT2)}, v0")
    piece(True)
    Ls = a.newlab("nop2")
    a.e(f"s_cmp_ge_u32 {s(sV)}, 2")
    a.e(f"s_cbranch_scc1 {Ls}")
    a.e(f"v_add_u32 {v(vT0)}, 512, {v(vT0)}")
    a.nop(2)
    piece(False)
    a.lab(Ls)
    a.e("s_waitcnt vmcnt(0)")
    a.e("s_barrier")
    stamp(a, 7)
    Le = a.newlab("noarr")
    a.e(f"s_cmp_lg_u32 {s(sV)}, 0")
    a.e(f"s_cbranch_scc1 {Le}")
    a.e(f"s_lshr_b32 {s(sT)}, {s(sQB)}, 3")
    a.e(f"s_lshl_b32 {s(sT)}, {s(sT)}, 6")
    a.e(f"s_and_b32 {s(sT2)}, {s(sQB)}, 7")
    a.e(f"s_lshl_b32 {s(sT2)}, {s(sT2)}, 2")
    a.e(f"s_add_u32 {s(sT)}, {s(sT)}, {s(sT2)}")
    a.e(f"s_add_u32 {s(sT)}, {s(sT)}, 32")
    a.e(f"v_mov_b32 {v(vT0)}, {s(sT)}")
    a.e(f"v_mov_b32 {v(vT1)}, 1")
    a.e("s_mov_b64 exec, 1")
    a.e(f"buffer_atomic_add {v(vT1)}, {v(vT0)}, {s(SDBG,4)}, 0 offen sc1")
    a.e("s_mov_b64 exec, -1")
    a.lab(Le)

def emit_A(a):
    stamp(a, 0)
    ids(a)
    qproj(a)
    stamp(a, 2)
    wait_b1(a)
    stamp(a, 3)
    Ls = attention(a)
    stamp(a, 5)
    stamp(a, 10, True)
    safety_vote(a, Ls)
    stamp(a, 6)
    epilogue(a)
    stamp(a, 8)
    stamp_flush(a, 11, SWS, sV, vT0, vT1)
    a.e("s_endpgm")
```

```python
from common import *
import common, math
sW, sC, sM, sV, sT = 3, 4, 5, 6, 7
SU, SX, SWS, SDBG, SWK, SWV = 8, 12, 16, 20, 24, 28
sPAre, sPAim, sPBre, sPBim, sPCre, sPCim, sPldt, sPD = 32, 34, 36, 38, 40, 42, 44, 46
SWO, SOUT = 48, 52
sT2, sT3, sT4 = 56, 57, 58
sPM = 80
sPC = 82
sCH = 83
sE = 84
sQB, sJ = 85, 86
sUnit, sCS = 87, 88
sP5 = 89
sEx = 90
L_UT0 = 71680
L_CNT = 71664
KG_STRIDE = 17408; KG_Y = 8704; KG_ROW = 272
L_A0 = 53248; A0_STRIDE = 4352
CP_STRIDE = 4416; CH_STRIDE = 4 * CP_STRIDE
L_UTL = 53248; UTL_STRIDE = 7600; UTL_Z = 2480

def ids(a):
    a.e(f"s_mov_b32 {s(sW)}, s2")
    for r, n in ((SU, "u"), (SX, "x"), (SWS, "ws"), (SDBG, "dbg"), (SWK, "wk"), (SWV, "wv"), (SWO, "wo"), (SOUT, "out")):
        srd(a, r, n, 0)
    for r, n in ((sPAre, "Are"), (sPAim, "Aim"), (sPBre, "Bre"), (sPBim, "Bim"), (sPCre, "Cre"), (sPCim, "Cim"), (sPldt, "ldt"), (sPD, "Dskip")):
        a.e(f"s_load_dwordx2 {s(r,2)}, s[0:1], {KA[n]}")
    a.e(f"v_lshrrev_b32 v1, 6, v0")
    a.e(f"s_and_b32 {s(sC)}, {s(sW)}, 7")
    a.e(f"s_lshr_b32 {s(sM)}, {s(sW)}, 3")
    a.e(f"v_readfirstlane_b32 {s(sV)}, v1")
    a.e(f"v_and_b32 v0, 63, v0")
    a.e(f"s_and_b32 {s(sE)}, {s(sM)}, 1")
    a.e(f"s_lshr_b32 {s(sT)}, {s(sM)}, 3")
    a.e(f"s_lshl_b32 {s(sT)}, {s(sT)}, 3")
    a.e(f"s_add_u32 {s(sQB)}, {s(sT)}, {s(sC)}")
    a.e(f"s_and_b32 {s(sJ)}, {s(sM)}, 7")
    a.e(f"s_lshr_b32 {s(sT)}, {s(sM)}, 1")
    a.e(f"s_mul_i32 {s(sT)}, {s(sT)}, 5")
    a.e(f"s_mul_i32 {s(sP5)}, {s(sC)}, 80")
    a.e(f"s_add_u32 {s(sP5)}, {s(sP5)}, {s(sT)}")
    for r, sz in ((SU, XSIZE), (SX, XSIZE), (SWS, WS_SIZE), (SDBG, 256), (SWK, WKVSIZE), (SWV, WKVSIZE), (SWO, WSIZE), (SOUT, OUTSIZE)):
        srd_fin(a, r, sz)

def tile_dma_160(a, srdr, sbase, lds_base, vt0, vt1, nrows_total=64, sc1=False):
    def one(first):
        a.e(f"v_mul_u32_u24 {v(vt1)}, 6554, {v(vt0)}")
        a.e(f"v_lshrrev_b32 {v(vt1)}, 16, {v(vt1)}")
        a.e(f"v_mul_u32_u24 {v(vt1)}, 1120, {v(vt1)}")
        a.e(f"v_lshl_add_u32 {v(vt1)}, {v(vt0)}, 4, {v(vt1)}")
        a.e(f"buffer_load_dwordx4 {v(vt1)}, {s(srdr,4)}, {s(sbase)} offen {'sc1 ' if sc1 else ''}lds")
    a.e(f"s_lshl_b32 {s(sT)}, {s(sV)}, 6")
    a.e(f"v_add_u32 {v(vt0)}, {s(sT)}, v0")
    a.e(f"s_lshl_b32 {s(sT)}, {s(sV)}, 10")
    a.e(f"s_add_u32 m0, {s(sT)}, {lds_base}")
    one(True)
    L = a.newlab("td2")
    a.e(f"s_cmp_ge_u32 {s(sV)}, 2")
    a.e(f"s_cbranch_scc1 {L}")
    a.e(f"v_add_u32 {v(vt0)}, 512, {v(vt0)}")
    a.e(f"s_add_u32 m0, {s(sT)}, {lds_base + 8192}")
    one(False)
    a.lab(L)

def u_tile_load(a):
    a.c("==== B: start u tile DMA ====")
    a.e(f"s_mul_i32 {s(sT2)}, {s(sM)}, {64*1280}")
    a.e(f"s_mul_i32 {s(sT3)}, {s(sC)}, 160")
    a.e(f"s_add_u32 {s(sT2)}, {s(sT2)}, {s(sT3)}")
    for e in range(640): assert (e * 6554) >> 16 == e // 10
    tile_dma_160(a, SU, sT2, L_UT0, 2, 3)

def lds_arrive(a, ncount, vt0, vt1, dbg_off_sreg, name):
    L = a.newlab("arr_" + name)
    a.e(f"v_mov_b32 {v(vt0)}, {L_CNT}")
    a.e(f"v_mov_b32 {v(vt1)}, 1")
    a.e("s_mov_b64 exec, 1")
    a.e(f"ds_add_rtn_u32 {v(vt1)}, {v(vt0)}, {v(vt1)}")
    a.e("s_waitcnt lgkmcnt(0)")
    a.e(f"v_readfirstlane_b32 {s(sT)}, {v(vt1)}")
    a.nop(2)
    a.e(f"s_cmp_lg_u32 {s(sT)}, {ncount-1}")
    a.e(f"s_cbranch_scc1 {L}")
    a.e(f"v_mov_b32 {v(vt0)}, {s(dbg_off_sreg)}")
    a.e(f"v_mov_b32 {v(vt1)}, 1")
    a.e(f"buffer_atomic_add {v(vt1)}, {v(vt0)}, {s(SDBG,4)}, 0 offen sc1")
    a.lab(L)
    a.e("s_mov_b64 exec, -1")

def global_arrive(a, vt0, vt1, dbg_off_sreg):
    L = a.newlab("garr")
    a.e(f"s_cmp_lg_u32 {s(sV)}, 0")
    a.e(f"s_cbranch_scc1 {L}")
    a.e(f"v_mov_b32 {v(vt0)}, {s(dbg_off_sreg)}")
    a.e(f"v_mov_b32 {v(vt1)}, 1")
    a.e("s_mov_b64 exec, 1")
    a.e(f"buffer_atomic_add {v(vt1)}, {v(vt0)}, {s(SDBG,4)}, 0 offen sc1")
    a.e("s_mov_b64 exec, -1")
    a.lab(L)

def dbg_off(a, dst, kind):
    if kind in ("B0", "B3"):
        a.e(f"s_lshr_b32 {s(dst)}, {s(sC)}, 1")
        a.e(f"s_lshl_b32 {s(dst)}, {s(dst)}, 6")
        a.e(f"s_and_b32 {s(sT)}, {s(sC)}, 1")
        a.e(f"s_lshl_b32 {s(sT)}, {s(sT)}, 2")
        a.e(f"s_add_u32 {s(dst)}, {s(dst)}, {s(sT)}")
        a.e(f"s_add_u32 {s(dst)}, {s(dst)}, {8 if kind == 'B0' else 16}")
    else:
        a.e(f"s_lshr_b32 {s(dst)}, {s(sQB)}, 3")
        a.e(f"s_lshl_b32 {s(dst)}, {s(dst)}, 6")
        a.e(f"s_and_b32 {s(sT)}, {s(sQB)}, 7")
        a.e(f"s_lshl_b32 {s(sT)}, {s(sT)}, 2")
        a.e(f"s_add_u32 {s(dst)}, {s(dst)}, {s(sT)}")
        a.e(f"s_add_u32 {s(dst)}, {s(dst)}, 32")

def wait_counter(a, kind, target, vt0, vt1):
    L = a.newlab("nopoll")
    a.e(f"s_cmp_lg_u32 {s(sV)}, 0")
    a.e(f"s_cbranch_scc1 {L}")
    dbg_off(a, sT2, kind)
    a.e(f"v_mov_b32 {v(vt0)}, {s(sT2)}")
    poll_counter(a, SDBG, vt0, vt1, target, 1, sPC, sPM, kind, sleep=2)
    a.lab(L)
    a.e("s_barrier")

def kvproj(a):
    a.c("==== B: K/V projection (workgroups 0..63) ====")
    Lskip = a.newlab("nokv")
    a.e(f"s_cmp_ge_u32 {s(sW)}, 64")
    a.e(f"s_cbranch_scc1 {Lskip}")
    XF = 8
    accK, accV = 32, 48
    WF = 64
    a.e(f"v_and_b32 v2, 31, v0")
    a.e(f"v_mul_u32_u24 v2, 1280, v2")
    a.e(f"v_lshrrev_b32 v3, 5, v0")
    a.e(f"v_lshl_add_u32 v2, v3, 4, v2")
    a.e(f"s_mul_i32 {s(sT2)}, {s(sW)}, {32*1280}")
    a.e(f"s_mul_i32 {s(sT3)}, {s(sV)}, 160")
    a.e(f"s_add_u32 {s(sT2)}, {s(sT2)}, {s(sT3)}")
    for ks in range(5):
        a.e(f"buffer_load_dwordx4 {v(XF+4*ks,4)}, v2, {s(SX,4)}, {s(sT2)} offen offset:{32*ks}")
    a.e(f"v_lshlrev_b32 v3, 4, v0")
    a.e(f"s_mul_i32 {s(sT3)}, {s(sV)}, 3200")
    a.e(f"s_lshl_b32 {s(sT4)}, {s(sV)}, 13")
    for srdr, off in ((SWK, 0), (SWV, 3200)):
        a.e(f"s_add_u32 m0, {s(sT4)}, {off}")
        a.e("s_nop 0")
        for i in range(3):
            a.e(f"buffer_load_dwordx4 v3, {s(srdr,4)}, {s(sT3)} offen offset:{1024*i} lds")
        a.e("s_mov_b64 exec, 0xff")
        a.e(f"buffer_load_dwordx4 v3, {s(srdr,4)}, {s(sT3)} offen offset:3072 lds")
        a.e("s_mov_b64 exec, -1")
    a.e(f"v_lshrrev_b32 v4, 5, v0")
    a.e(f"v_lshlrev_b32 v4, 3, v4")
    a.e(f"v_bfe_u32 v5, v0, 2, 2")
    a.e(f"v_add_u32 v4, v4, v5")
    a.e(f"v_mul_u32_u24 v4, 40, v4")
    a.e(f"v_bfe_u32 v5, v0, 4, 1")
    a.e(f"v_lshl_add_u32 v4, v5, 5, v4")
    a.e(f"v_and_b32 v5, 3, v0")
    a.e(f"v_lshl_add_u32 v4, v5, 3, v4")
    a.e(f"v_add_u32 v4, {s(sT4)}, v4")
    a.e("s_waitcnt vmcnt(0)")
    for ks in range(5):
        for w, off in ((0, 0), (1, 3200)):
            r = WF + 8 * ks + 4 * w
            a.e(f"ds_read_b64_tr_b16 {v(r,2)}, v4 offset:{off + 640*ks}")
            a.e(f"ds_read_b64_tr_b16 {v(r+2,2)}, v4 offset:{off + 640*ks + 160}")
    for ks in range(5):
        a.e(f"s_waitcnt lgkmcnt({min(15, 4*(4-ks))})")
        r = WF + 8 * ks
        cK = "0" if ks == 0 else v(accK, 16); cV = "0" if ks == 0 else v(accV, 16)
        a.e(f"v_mfma_f32_32x32x16_bf16 {v(accK,16)}, {v(r,4)}, {v(XF+4*ks,4)}, {cK}")
        a.e(f"v_mfma_f32_32x32x16_bf16 {v(accV,16)}, {v(XF+4*ks,4)}, {v(r+4,4)}, {cV}")
    a.e(f"v_lshlrev_b32 v5, 4, v0")
    a.e(f"v_add_u32 v5, {s(sT4)}, v5")
    a.nop(14)
    for q in range(4):
        a.e(f"ds_write_b128 v5, {v(accK+4*q,4)} offset:{1024*q}")
    for q in range(4):
        a.e(f"ds_write_b128 v5, {v(accV+4*q,4)} offset:{4096+1024*q}")
    a.e("s_waitcnt lgkmcnt(0)")
    a.e("s_barrier")
    Lred_done = a.newlab("kvred_done"); LV = a.newlab("kvV")
    a.e(f"s_cmp_gt_u32 {s(sV)}, 2")
    a.e(f"s_cbranch_scc1 {Lred_done}")
    a.e(f"v_lshlrev_b32 v5, 4, v0")
    a.e(f"s_cmp_lg_u32 {s(sV)}, 0")
    a.e(f"s_cbranch_scc1 {LV}")
    def reduce(nq, qoff, sum0):
        B = 8
        for half in range(2):
            for p in range(4):
                for q in range(nq):
                    a.e(f"ds_read_b128 {v(B + (p*nq+q)*4, 4)}, v5 offset:{(4*half+p)*8192 + qoff + 1024*q}")
            a.e("s_waitcnt lgkmcnt(0)")
            for r in range(4 * nq):
                x = [B + p*nq*4 + r for p in range(4)]
                a.e(f"v_add_f32 {v(x[0])}, {v(x[0])}, {v(x[1])}")
                a.e(f"v_add_f32 {v(x[2])}, {v(x[2])}, {v(x[3])}")
                if half == 0:
                    a.e(f"v_add_f32 {v(sum0+r)}, {v(x[0])}, {v(x[2])}")
                else:
                    a.e(f"v_add_f32 {v(x[0])}, {v(x[0])}, {v(x[2])}")
                    a.e(f"v_add_f32 {v(sum0+r)}, {v(sum0+r)}, {v(x[0])}")
    SUM = 64
    reduce(3, 0, SUM)
    a.e("s_mov_b32 exec_lo, 0")
    for r in range(8, 12): a.e(f"v_mov_b32 {v(SUM+r)}, 0")
    a.e("s_mov_b32 exec_lo, -1")
    a.e(f"v_mul_f32 v6, {v(SUM)}, {v(SUM)}")
    for r in range(1, 12): a.e(f"v_fmac_f32 v6, {v(SUM+r)}, {v(SUM+r)}")
    for i in range(6): a.e(f"v_cvt_pk_bf16_f32 {v(80+i)}, {v(SUM+2*i)}, {v(SUM+2*i+1)}")
    a.e("s_mov_b32 exec_lo, 0")
    a.e(f"v_mov_b32 v84, 0x3f803f80")
    a.e("s_mov_b32 exec_lo, -1")
    a.e(f"s_mul_i32 {s(sT2)}, {s(sW)}, 3072")
    if WS_KV: a.e(f"s_add_u32 {s(sT2)}, {s(sT2)}, {WS_KV}")
    a.e(f"buffer_store_dwordx4 v[80:83], v5, {s(SWS,4)}, {s(sT2)} offen sc1")
    a.e(f"v_lshlrev_b32 v7, 3, v0")
    a.e(f"buffer_store_dwordx2 v[84:85], v7, {s(SWS,4)}, {s(sT2)} offen offset:1024 sc1")
    a.e(f"v_mov_b32 v7, v6")
    a.nop(2)
    a.e(f"v_permlane32_swap_b32 v6, v7")
    a.nop(1)
    a.e(f"v_add_f32 v6, v6, v7")
    for d in ("row_shr:1", "row_shr:2", "row_shr:4", "row_shr:8", "row_bcast:15 row_mask:0xa", "row_bcast:31 row_mask:0xc"):
        a.nop(2)
        a.e(f"v_max_f32_dpp v6, v6, v6 {d}" + ("" if "row_mask" in d else " row_mask:0xf") + " bank_mask:0xf")
    a.nop(2)
    a.e(f"v_readlane_b32 {s(sT3)}, v6, 63")
    a.nop(2)
    a.e(f"v_mov_b32 v6, {s(sT3)}")
    a.e(f"v_mov_b32 v7, {DBG_KMAX}")
    a.e("s_mov_b64 exec, 1")
    a.e(f"buffer_atomic_umax v6, v7, {s(SDBG,4)}, 0 offen sc1")
    a.e("s_mov_b64 exec, -1")
    a.e(f"s_branch {Lred_done}")
    a.lab(LV)
    a.e(f"s_sub_u32 {s(sT)}, {s(sV)}, 1")
    a.e(f"s_lshl_b32 {s(sT)}, {s(sT)}, 11")
    a.e(f"v_add_u32 v5, {s(sT)}, v5")
    reduce(2, 4096, SUM)
    for i in range(4): a.e(f"v_cvt_pk_bf16_f32 {v(80+i)}, {v(SUM+2*i)}, {v(SUM+2*i+1)}")
    a.e(f"v_and_b32 v6, 31, v0")
    a.e(f"v_cmp_lt_u32 vcc, 19, v6")
    a.e(f"s_and_saveexec_b64 {s(sEx,2)}, vcc")
    for i in range(4): a.e(f"v_mov_b32 {v(80+i)}, 0")
    a.e(f"s_mov_b64 exec, {s(sEx,2)}")
    a.e(f"v_cmp_eq_u32 vcc, 20, v6")
    a.e(f"s_and_saveexec_b64 {s(sEx,2)}, vcc")
    for i in range(4): a.e(f"v_mov_b32 {v(80+i)}, 0x3f803f80")
    a.e(f"s_mov_b64 exec, {s(sEx,2)}")
    a.e(f"v_lshrrev_b32 v7, 5, v0")
    a.e(f"v_mul_u32_u24 v7, 24, v7")
    a.e(f"v_add_u32 v7, v7, v6")
    a.e(f"v_lshlrev_b32 v7, 4, v7")
    a.e(f"s_mul_i32 {s(sT2)}, {s(sW)}, 3072")
    a.e(f"s_sub_u32 {s(sT)}, {s(sV)}, 1")
    a.e(f"s_mul_i32 {s(sT)}, {s(sT)}, 768")
    a.e(f"s_add_u32 {s(sT2)}, {s(sT2)}, {s(sT)}")
    a.e(f"s_add_u32 {s(sT2)}, {s(sT2)}, {WS_KV + 1536}")
    a.e(f"v_cmp_gt_u32 vcc, 24, v6")
    a.e(f"s_and_saveexec_b64 {s(sEx,2)}, vcc")
    a.e(f"buffer_store_dwordx4 v[80:83], v7, {s(SWS,4)}, {s(sT2)} offen sc1")
    a.e(f"s_mov_b64 exec, {s(sEx,2)}")
    a.lab(Lred_done)
    a.e("s_waitcnt vmcnt(0)")
    a.e("s_barrier")
    a.e(f"s_and_b32 {s(sT2)}, {s(sW)}, 3")
    a.e(f"s_lshl_b32 {s(sT2)}, {s(sT2)}, 6")
    global_arrive(a, 6, 7, sT2)
    a.lab(Lskip)

def u_transpose(a):
    a.c("==== B: u tile -> u^T ====")
    a.e(f"s_sub_u32 {s(sT2)}, {s(sV)}, 3")
    a.e(f"v_lshrrev_b32 v2, 4, v0")
    a.e(f"v_lshlrev_b32 v2, 3, v2")
    a.e(f"v_bfe_u32 v3, v0, 2, 2")
    a.e(f"v_add_u32 v2, v2, v3")
    a.e(f"v_mul_u32_u24 v2, 160, v2")
    a.e(f"v_and_b32 v3, 3, v0")
    a.e(f"v_lshl_add_u32 v2, v3, 3, v2")
    a.e(f"s_lshl_b32 {s(sT)}, {s(sT2)}, 5")
    a.e(f"s_add_u32 {s(sT)}, {s(sT)}, {L_UT0}")
    a.e(f"v_add_u32 v2, {s(sT)}, v2")
    for th in range(2):
        a.e(f"ds_read_b64_tr_b16 {v(8+4*th,2)}, v2 offset:{th*5120}")
        a.e(f"ds_read_b64_tr_b16 {v(10+4*th,2)}, v2 offset:{th*5120+640}")
    a.e(f"v_and_b32 v3, 15, v0")
    a.e(f"v_lshlrev_b32 v3, 12, v3")
    a.e(f"v_lshrrev_b32 v4, 4, v0")
    a.e(f"v_lshl_add_u32 v3, v4, 4, v3")
    a.e(f"s_mul_i32 {s(sT)}, {s(sC)}, 80")
    a.e(f"s_lshl_b32 {s(sT2)}, {s(sT2)}, 4")
    a.e(f"s_add_u32 {s(sT)}, {s(sT)}, {s(sT2)}")
    a.e(f"s_lshl_b32 {s(sT)}, {s(sT)}, 12")
    a.e(f"s_lshl_b32 {s(sT2)}, {s(sM)}, 7")
    a.e(f"s_add_u32 {s(sT)}, {s(sT)}, {s(sT2)}")
    a.e(f"s_add_u32 {s(sT)}, {s(sT)}, {WS_UT}")
    a.e("s_waitcnt lgkmcnt(2)")
    a.e(f"buffer_store_dwordx4 v[8:11], v3, {s(SWS,4)}, {s(sT)} offen sc1")
    a.e("s_waitcnt lgkmcnt(0)")
    a.e(f"buffer_store_dwordx4 v[12:15], v3, {s(SWS,4)}, {s(sT)} offen offset:64 sc1")
    a.e("s_waitcnt vmcnt(0)")
    dbg_off(a, sT2, "B0")
    lds_arrive(a, 5, 2, 3, sT2, "b0")

XROWS = {}
def rowidx(h, r): return (r & 3) + 8 * (r >> 2) + 4 * h
for r, c_ in enumerate(list(range(8)) + [256, 258, 260, 262, 264]): XROWS[c_] = rowidx(0, r)
for r, c_ in enumerate([512, 516, 520, 768, 772, 776, 1024, 1032, 1280, 1288, 1536, 1544, 1792, 1800]): XROWS[c_] = rowidx(1, r)

def cmul(a, d, x, w, t):
    a.e(f"v_pk_mul_f32 {v(t,2)}, {v(x,2)}, {v(w,2)} op_sel:[1,1] op_sel_hi:[1,0]")
    a.e(f"v_pk_fma_f32 {v(d,2)}, {v(x,2)}, {v(w,2)}, {v(t,2)} op_sel:[0,0,0] op_sel_hi:[0,1,1] neg_lo:[0,0,1]")

def kgen_loads(a):
    a.c("==== B: K generation parameter loads (waves 0..2) ====")
    Lskip = a.newlab("kgl_skip")
    a.e(f"s_cmp_ge_u32 {s(sV)}, 3")
    a.e(f"s_cbranch_scc1 {Lskip}")
    chan_of_slot(a, sCH, sV)
    a.e(f"s_lshl_b32 {s(sT)}, {s(sCH)}, 8")
    a.e(f"v_lshlrev_b32 v2, 1, v0")
    a.e(f"v_add_u32 v2, {s(sT)}, v2")
    for hf in range(2):
        for i, p in enumerate((sPAre, sPAim, sPBre, sPBim, sPCre, sPCim)):
            a.e(f"global_load_ushort {v(PR+6*hf+i)}, v2, {s(p,2)} offset:{128*hf}")
    a.e(f"s_lshl_b32 {s(sT)}, {s(sCH)}, 1")
    a.e(f"v_mov_b32 v3, {s(sT)}")
    a.e(f"global_load_ushort {v(vDT)}, v3, {s(sPldt,2)}")
    a.lab(Lskip)

PR = 112
vDT = 124
def kgen(a):
    a.c("==== B: K generation (waves 0..2) ====")
    a.e(f"s_mul_i32 {s(sT2)}, {s(sV)}, {KG_STRIDE}")
    a.e(f"v_lshlrev_b32 v4, 2, v0")
    a.e(f"v_add_u32 v4, {s(sT2)}, v4")
    a.e(f"v_and_b32 v5, 31, v0")
    a.e(f"v_mul_u32_u24 v5, {KG_ROW}, v5")
    a.e(f"v_lshrrev_b32 v6, 5, v0")
    a.e(f"v_lshl_add_u32 v5, v6, 4, v5")
    a.e(f"v_add_u32 v5, {s(sT2)}, v5")
    acc = 96
    L2E = math.log2(math.e)
    a.e(f"v_lshlrev_b32 v20, 16, {v(vDT)}")
    a.e(f"s_mov_b32 {s(sT)}, {hexf(L2E)}")
    a.e(f"v_mul_f32 v20, {s(sT)}, v20")
    a.e(f"v_exp_f32 v20, v20")
    a.nop(1)
    a.e(f"v_cvt_pk_bf16_f32 v20, v20, v20")
    a.e(f"v_lshlrev_b32 v20, 16, v20")
    Z1, Z2, Z4, Z8, Z256, W_, X, T, Y, ZC8, T2 = 24, 26, 28, 30, 32, 34, 36, 38, 40, 42, 44
    AR, BI = 22, 23
    XS = 46
    for hf in range(2):
        p = PR + 6 * hf
        for i in range(6): a.e(f"v_lshlrev_b32 {v(p+i)}, 16, {v(p+i)}")
        a.e(f"v_mul_f32 {v(AR)}, v20, {v(p)}")
        a.e(f"v_mul_f32 {v(BI)}, v20, {v(p+1)}")
        a.e(f"s_mov_b32 {s(sT)}, {hexf(L2E)}")
        a.e(f"v_mul_f32 {v(AR)}, {s(sT)}, {v(AR)}")
        a.e(f"v_mul_f32 {v(BI)}, {hexf(1.0/(2*math.pi))}, {v(BI)}")
        a.e(f"v_mul_f32 {v(p+2)}, v20, {v(p+2)}")
        a.e(f"v_mul_f32 {v(p+3)}, v20, {v(p+3)}")
        a.e(f"v_mul_f32 {v(T)}, {v(p+5)}, {v(p+3)}")
        a.e(f"v_fma_f32 {v(W_)}, {v(p+4)}, {v(p+2)}, -{v(T)}")
        a.e(f"v_mul_f32 {v(T)}, {v(p+5)}, {v(p+2)}")
        a.e(f"v_fma_f32 {v(W_+1)}, {v(p+4)}, {v(p+3)}, {v(T)}")
        for zr, l in ((Z1, 1.0), (Z2, 2.0), (Z4, 4.0), (Z8, 8.0), (Z256, 256.0)):
            if l == 256.0:
                a.e(f"v_mul_f32 {v(T)}, {hexf(l)}, {v(AR)}")
                a.e(f"v_mul_f32 {v(T+1)}, {hexf(l)}, {v(BI)}")
            else:
                lit = {1.0: "1.0", 2.0: "2.0", 4.0: "4.0", 8.0: hexf(8.0)}[l]
                a.e(f"v_mul_f32 {v(T)}, {lit}, {v(AR)}")
                a.e(f"v_mul_f32 {v(T+1)}, {lit}, {v(BI)}")
            a.e(f"v_exp_f32 {v(T)}, {v(T)}")
            a.e(f"v_fract_f32 {v(T+1)}, {v(T+1)}")
            a.e(f"v_cos_f32 {v(zr)}, {v(T+1)}")
            a.e(f"v_sin_f32 {v(zr+1)}, {v(T+1)}")
            a.nop(1)
            a.e(f"v_mul_f32 {v(zr)}, {v(zr)}, {v(T)}")
            a.e(f"v_mul_f32 {v(zr+1)}, {v(zr+1)}, {v(T)}")
        a.e(f"v_mov_b32 {v(ZC8)}, {v(Z8)}")
        a.e(f"v_xor_b32 {v(ZC8+1)}, 0x80000000, {v(Z8+1)}")
        xops = []
        def putX(reg, c_):
            return [f"v_cvt_pk_bf16_f32 {v(T2)}, {v(reg)}, {v(reg+1)}", f"ds_write_b32 v4, {v(T2)} offset:{XROWS[c_]*KG_ROW}"]
        def putY(reg, b):
            return [f"v_cvt_pk_bf16_f32 {v(T2+1)}, {v(reg)}, {v(reg+1)}", f"ds_write_b32 v4, {v(T2+1)} offset:{KG_Y + b*KG_ROW}"]
        def cm(d, x, w, t):
            return [f"v_pk_mul_f32 {v(t,2)}, {v(x,2)}, {v(w,2)} op_sel:[1,1] op_sel_hi:[1,0]",
                    f"v_pk_fma_f32 {v(d,2)}, {v(x,2)}, {v(w,2)}, {v(t,2)} op_sel:[0,0,0] op_sel_hi:[0,1,1] neg_lo:[0,0,1]"]
        XA, XB = X, XS
        xs = []
        xs.append(putX(W_, 0))
        prev = W_
        for c_ in range(1, 8):
            xs.append(cm(XA, prev, Z1, T) + putX(XA, c_)); prev = XA
        xs.append(cm(XB, W_, Z256, T) + putX(XB, 256))
        prev = XB
        for c_ in (258, 260, 262, 264):
            xs.append(cm(XA, prev, Z2, T) + putX(XA, c_)); prev = XA
        for base in (512, 768):
            xs.append(cm(XB, XB, Z256, T) + putX(XB, base))
            xs.append(cm(XA, XB, Z4, T) + putX(XA, base + 4))
            xs.append(cm(XA, XA, Z4, T) + putX(XA, base + 8))
        for base in (1024, 1280, 1536, 1792):
            xs.append(cm(XB, XB, Z256, T) + putX(XB, base))
            xs.append(cm(XA, XB, Z8, T) + putX(XA, base + 8))
        ys = []
        ys.append([f"v_mov_b32 {v(Y)}, 1.0", f"v_mov_b32 {v(Y+1)}, 0"] + putY(Y, 0))
        TY = T2 + 2 - 0
        for b in range(1, 32):
            ys.append(cm(Y, Y, ZC8, 50) + putY(Y, b))
        n = max(len(xs), len(ys))
        for i in range(n):
            xa = xs[i] if i < len(xs) else []
            ya = ys[i] if i < len(ys) else []
            m_ = max(len(xa), len(ya))
            for k in range(m_):
                if k < len(xa): a.e(xa[k])
                if k < len(ya): a.e(ya[k])
        a.e("s_waitcnt lgkmcnt(0)")
        FA, FB = 52, 56
        for grp in range(2):
            for k in range(4):
                ks = 4 * grp + k
                a.e(f"ds_read_b128 {v(60+8*k,4)}, v5 offset:{32*ks}")
                a.e(f"ds_read_b128 {v(64+8*k,4)}, v5 offset:{KG_Y + 32*ks}")
            for k in range(4):
                a.e(f"s_waitcnt lgkmcnt({6-2*k})")
                cin = "0" if (hf == 0 and grp == 0 and k == 0) else v(acc, 16)
                a.e(f"v_mfma_f32_32x32x16_bf16 {v(acc,16)}, {v(60+8*k,4)}, {v(64+8*k,4)}, {cin}")
    a.nop(14)
    a.e(f"s_mul_i32 {s(sT2)}, {s(sV)}, {A0_STRIDE}")
    a.e(f"s_add_u32 {s(sT2)}, {s(sT2)}, {L_A0}")
    a.e(f"v_and_b32 v2, 31, v0")
    a.e(f"v_lshlrev_b32 v2, 4, v2")
    a.e(f"v_sub_u32 v2, {2040*2}, v2")
    a.e(f"v_add_u32 v2, {s(sT2)}, v2")
    a.e(f"v_lshlrev_b32 v3, 2, v0")
    a.e(f"v_add_u32 v3, {s(sT2)}, v3")
    a.e(f"v_mov_b32 v6, 0")
    a.e(f"ds_write_b32 v3, v6 offset:4096")
    D = 8
    def pk(d, lo, hi): a.e(f"v_cvt_pk_bf16_f32 {v(d)}, {v(acc+lo)}, {v(acc+hi)}")
    def wr(base):
        a.e(f"v_subrev_u32 v7, {2*base}, v2")
        a.e(f"ds_write_b128 v7, {v(D,4)}")
        a.nop(2)
    a.e("s_mov_b32 exec_hi, 0")
    pk(D, 7, 6); pk(D+1, 5, 4); pk(D+2, 3, 2); pk(D+3, 1, 0); wr(0)
    pk(D, 12, 11); pk(D+1, 10, 10); pk(D+2, 10, 9); pk(D+3, 8, 8); wr(256)
    a.e("s_mov_b32 exec_hi, -1")
    a.e("s_mov_b32 exec_lo, 0")
    for base, r0 in ((512, 0), (768, 3)):
        pk(D, r0+2, r0+2); pk(D+1, r0+1, r0+1); pk(D+2, r0+1, r0); pk(D+3, r0, r0); wr(base)
    a.e(f"s_mov_b32 {s(sPM)}, 0xaaaaaaaa")
    a.e(f"s_mov_b32 {s(sPM+1)}, 0xaaaaaaaa")
    for i, base in enumerate((1024, 1280, 1536, 1792)):
        g0, g8 = 6 + 2*i, 7 + 2*i
        a.e(f"v_cndmask_b32 v6, {v(acc+g0)}, {v(acc+g8)}, {s(sPM,2)}")
        pk(D, g8, g8)
        a.e(f"v_cvt_pk_bf16_f32 {v(D+1)}, {v(acc+g8)}, v6")
        pk(D+2, g0, g0); pk(D+3, g0, g0); wr(base)
    a.e("s_mov_b32 exec_lo, -1")
    a.e("s_waitcnt lgkmcnt(0)")

def expand(a):
    a.c("==== B: build the 4 shifted copies ====")
    def task(sreg):
        L = a.newlab("exp_skip")
        a.e(f"s_mul_i32 {s(sT2)}, {s(sreg)}, 13108")
        a.e(f"s_lshr_b32 {s(sT2)}, {s(sT2)}, 16")
        a.e(f"s_mul_i32 {s(sT3)}, {s(sT2)}, 5")
        a.e(f"s_sub_u32 {s(sT3)}, {s(sreg)}, {s(sT3)}")
        a.e(f"s_lshl_b32 {s(sT3)}, {s(sT3)}, 6")
        a.e(f"v_add_u32 v2, {s(sT3)}, v0")
        a.e(f"v_cmp_gt_u32 vcc, 264, v2")
        a.e(f"s_and_saveexec_b64 {s(sEx,2)}, vcc")
        a.e(f"v_lshlrev_b32 v2, 4, v2")
        a.e(f"s_mul_i32 {s(sT3)}, {s(sT2)}, {A0_STRIDE}")
        a.e(f"s_add_u32 {s(sT3)}, {s(sT3)}, {L_A0}")
        a.e(f"v_add_u32 v3, {s(sT3)}, v2")
        a.e(f"ds_read_b128 v[8:11], v3")
        a.e(f"ds_read_b64 v[12:13], v3 offset:16")
        a.e(f"s_mul_i32 {s(sT3)}, {s(sT2)}, {CH_STRIDE}")
        a.e(f"v_add_u32 v3, {s(sT3)}, v2")
        a.e("s_waitcnt lgkmcnt(0)")
        for k in range(5):
            a.e(f"v_alignbit_b32 {v(16+k)}, {v(9+k)}, {v(8+k)}, 16")
        a.e(f"ds_write_b128 v3, v[8:11]")
        a.e(f"ds_write_b128 v3, v[16:19] offset:{CP_STRIDE}")
        for k in range(4): a.e(f"v_mov_b32 {v(24+k)}, {v(9+k)}")
        for k in range(4): a.e(f"v_mov_b32 {v(28+k)}, {v(17+k)}")
        a.e(f"ds_write_b128 v3, v[24:27] offset:{2*CP_STRIDE}")
        a.e(f"ds_write_b128 v3, v[28:31] offset:{3*CP_STRIDE}")
        a.e(f"s_mov_b64 exec, {s(sEx,2)}")
    a.e(f"s_mov_b32 {s(sT4)}, {s(sV)}")
    task(sT4)
    L = a.newlab("exp2")
    a.e(f"s_cmp_ge_u32 {s(sV)}, 7")
    a.e(f"s_cbranch_scc1 {L}")
    a.nop(2)
    a.e(f"s_add_u32 {s(sT4)}, {s(sV)}, 8")
    task(sT4)
    a.lab(L)
    a.e("s_waitcnt lgkmcnt(0)")

def chan_of_slot(a, dst, slot_sreg):
    L1 = a.newlab("cs"); L2 = a.newlab("cs")
    a.e(f"s_cmp_eq_u32 {s(slot_sreg)}, 2")
    a.e(f"s_cbranch_scc1 {L1}")
    a.e(f"s_mul_i32 {s(dst)}, {s(sE)}, 3")
    a.e(f"s_add_u32 {s(dst)}, {s(dst)}, {s(sP5)}")
    a.e(f"s_add_u32 {s(dst)}, {s(dst)}, {s(slot_sreg)}")
    a.e(f"s_branch {L2}")
    a.lab(L1)
    a.e(f"s_add_u32 {s(dst)}, {s(sP5)}, 2")
    a.lab(L2)

def load_ut(a):
    a.c("==== B: u^T of own channels -> LDS (padded blocks of 80 B) ====")
    a.e(f"s_lshl_b32 {s(sT)}, {s(sV)}, 6")
    a.e(f"v_add_u32 v2, {s(sT)}, v0")
    a.e(f"v_mul_u32_u24 v3, 423, v2")
    a.e(f"v_lshrrev_b32 v3, 16, v3")
    for t_ in range(512): assert (t_ * 423) >> 16 == t_ // 155, t_
    a.e(f"v_mul_u32_u24 v4, {UTL_STRIDE - 155*16}, v3")
    a.e(f"v_lshl_add_u32 v4, v2, 4, v4")
    a.e(f"v_add_u32 v4, {L_UTL}, v4")
    for k in range(4): a.e(f"v_mov_b32 {v(8+k)}, 0")
    a.e(f"v_cmp_gt_u32 vcc, 465, v2")
    a.e(f"s_and_saveexec_b64 {s(sEx,2)}, vcc")
    a.e(f"ds_write_b128 v4, v[8:11]")
    a.e(f"s_mov_b64 exec, {s(sEx,2)}")
    def task(sreg):
        a.e(f"s_mul_i32 {s(sCS)}, {s(sreg)}, 13108")
        a.e(f"s_lshr_b32 {s(sCS)}, {s(sCS)}, 16")
        a.e(f"s_mul_i32 {s(sT3)}, {s(sCS)}, 5")
        a.e(f"s_sub_u32 {s(sT3)}, {s(sreg)}, {s(sT3)}")
        chan_of_slot(a, sCH, sCS)
        a.e(f"s_lshl_b32 {s(sT2)}, {s(sT3)}, 6")
        a.e(f"v_add_u32 v2, {s(sT2)}, v0")
        a.e(f"v_mul_u32_u24 v3, 13108, v2")
        a.e(f"v_lshrrev_b32 v3, 16, v3")
        a.e(f"v_mul_u32_u24 v4, 5, v3")
        a.e(f"v_sub_u32 v4, v2, v4")
        a.e(f"v_and_b32 v4, 3, v4")
        a.e(f"v_lshlrev_b32 v3, 6, v3")
        a.e(f"v_lshl_add_u32 v3, v4, 4, v3")
        a.e(f"s_lshl_b32 {s(sT2)}, {s(sCH)}, 12")
        a.e(f"s_add_u32 {s(sT2)}, {s(sT2)}, {WS_UT}")
        a.e(f"s_mul_i32 {s(sT)}, {s(sCS)}, {UTL_STRIDE}")
        a.e(f"s_lshl_b32 {s(sT3)}, {s(sT3)}, 10")
        a.e(f"s_add_u32 {s(sT)}, {s(sT)}, {s(sT3)}")
        a.e(f"s_add_u32 m0, {s(sT)}, {L_UTL + UTL_Z}")
        a.e("s_nop 0")
        a.e(f"buffer_load_dwordx4 v3, {s(SWS,4)}, {s(sT2)} offen sc1 lds")
    for e in range(320): assert (e * 13108) >> 16 == e // 5
    a.e(f"s_mov_b32 {s(sT4)}, {s(sV)}")
    task(sT4)
    L = a.newlab("ut2")
    a.e(f"s_cmp_ge_u32 {s(sV)}, 7")
    a.e(f"s_cbranch_scc1 {L}")
    a.e(f"s_add_u32 {s(sT4)}, {s(sV)}, 8")
    task(sT4)
    a.lab(L)
    a.e("s_waitcnt vmcnt(0) lgkmcnt(0)")
    a.e("s_barrier")

def conv(a):
    a.c("==== B: Toeplitz convolution on MFMA ====")
    L6 = a.newlab("cv6"); Ld = a.newlab("cvd"); Lidle = a.newlab("cv_idle")
    a.e(f"s_cmp_ge_u32 {s(sV)}, 6")
    a.e(f"s_cbranch_scc1 {L6}")
    a.e(f"s_cmp_ge_u32 {s(sV)}, 3")
    a.e(f"s_cselect_b32 {s(sCS)}, 1, 0")
    a.e(f"s_mul_i32 {s(sT)}, {s(sCS)}, 3")
    a.e(f"s_sub_u32 {s(sUnit)}, {s(sV)}, {s(sT)}")
    a.e(f"s_branch {Ld}")
    a.lab(L6)
    a.e(f"s_mov_b32 {s(sCS)}, 2")
    a.e(f"s_sub_u32 {s(sT)}, {s(sV)}, 5")
    a.e(f"s_cmp_eq_u32 {s(sV)}, 6")
    a.e(f"s_cselect_b32 {s(sT2)}, 0, 3")
    a.e(f"s_cmp_eq_u32 {s(sE)}, 0")
    a.e(f"s_cselect_b32 {s(sUnit)}, {s(sT)}, {s(sT2)}")
    a.lab(Ld)
    acc = 16
    a.e(f"s_cmp_eq_u32 {s(sUnit)}, 3")
    a.e(f"s_cbranch_scc1 {Lidle}")
    a.e(f"v_and_b32 v2, 31, v0")
    a.e(f"v_lshrrev_b32 v3, 5, v0")
    a.e(f"v_sub_u32 v4, 3, v2")
    a.e(f"v_and_b32 v4, 3, v4")
    a.e(f"s_cmp_eq_u32 {s(sUnit)}, 2")
    a.e(f"s_cselect_b32 {s(sT)}, 32, 0")
    a.e(f"s_add_u32 {s(sT)}, {s(sT)}, 31")
    a.e(f"s_lshl_b32 {s(sT)}, {s(sT)}, 5")
    a.e(f"s_sub_u32 {s(sT)}, 2047, {s(sT)}")
    a.e(f"v_sub_u32 v5, {s(sT)}, v2")
    a.e(f"v_lshl_add_u32 v5, v3, 3, v5")
    a.e(f"v_sub_u32 v5, v5, v4")
    a.e(f"v_lshlrev_b32 v5, 1, v5")
    a.e(f"v_mul_u32_u24 v4, {CP_STRIDE}, v4")
    a.e(f"v_add_u32 v5, v5, v4")
    a.e(f"s_mul_i32 {s(sT)}, {s(sCS)}, {CH_STRIDE}")
    a.e(f"v_add_u32 v5, {s(sT)}, v5")
    a.e(f"s_cmp_eq_u32 {s(sUnit)}, 1")
    a.e(f"s_cselect_b32 {s(sT)}, 32, 0")
    a.e(f"v_add_u32 v6, {s(sT)}, v2")
    a.e(f"v_mul_u32_u24 v6, 80, v6")
    a.e(f"v_lshl_add_u32 v6, v3, 4, v6")
    a.e(f"s_mul_i32 {s(sT)}, {s(sCS)}, {UTL_STRIDE}")
    a.e(f"s_add_u32 {s(sT)}, {s(sT)}, {L_UTL + UTL_Z - 80*31}")
    a.e(f"v_add_u32 v6, {s(sT)}, v6")
    steps = [(dp, ks) for dp in range(32) for ks in range(2)]
    NB = 4
    FA = [32 + 8*i for i in range(NB)]; FB = [36 + 8*i for i in range(NB)]
    def rd(n):
        dp, ks = steps[n]; st = n % NB
        oa = 2 * (32 * (31 - dp) + 16 * ks)
        a.e(f"ds_read_b64 {v(FA[st],2)}, v5 offset:{oa}")
        a.e(f"ds_read_b64 {v(FA[st]+2,2)}, v5 offset:{oa+8}")
        a.e(f"ds_read_b128 {v(FB[st],4)}, v6 offset:{80*(31-dp) + 32*ks}")
    for n in range(NB - 1): rd(n)
    for n in range(64):
        if n + NB - 1 < 64:
            rd(n + NB - 1)
            a.e(f"s_waitcnt lgkmcnt({3*(NB-1)})")
        else:
            a.e(f"s_waitcnt lgkmcnt({3*(63-n)})")
        st = n % NB
        cin = "0" if n == 0 else v(acc, 16)
        a.e(f"v_mfma_f32_32x32x16_bf16 {v(acc,16)}, {v(FA[st],4)}, {v(FB[st],4)}, {cin}")
    a.nop(14)
    a.lab(Lidle)
    a.e("s_barrier")
    PART = 0; STG = 16384
    Ln2 = a.newlab("cv_n2")
    a.e(f"v_lshlrev_b32 v2, 4, v0")
    a.e(f"s_lshl_b32 {s(sT)}, {s(sCS)}, 12")
    a.e(f"v_add_u32 v2, {s(sT)}, v2")
    a.e(f"s_cmp_lg_u32 {s(sUnit)}, 2")
    a.e(f"s_cbranch_scc1 {Ln2}")
    for q in range(4): a.e(f"ds_write_b128 v2, {v(acc+4*q,4)} offset:{PART + 1024*q}")
    a.e("s_waitcnt lgkmcnt(0)")
    a.lab(Ln2)
    a.e("s_barrier")
    Lfin = a.newlab("cv_fin"); Lno = a.newlab("cv_noadd")
    a.e(f"s_cmp_ge_u32 {s(sUnit)}, 2")
    a.e(f"s_cbranch_scc1 {Lfin}")
    a.e(f"s_cmp_eq_u32 {s(sUnit)}, 0")
    a.e(f"s_cbranch_scc1 {Lno}")
    for q in range(4): a.e(f"ds_read_b128 {v(32+4*q,4)}, v2 offset:{PART + 1024*q}")
    a.e("s_waitcnt lgkmcnt(0)")
    for r in range(16): a.e(f"v_add_f32 {v(acc+r)}, {v(acc+r)}, {v(32+r)}")
    a.lab(Lno)
    for i in range(8): a.e(f"v_cvt_pk_bf16_f32 {v(32+i)}, {v(acc+2*i)}, {v(acc+2*i+1)}")
    a.e(f"v_and_b32 v3, 31, v0")
    a.e(f"v_lshlrev_b32 v3, 6, v3")
    a.e(f"v_lshrrev_b32 v4, 5, v0")
    a.e(f"v_lshl_add_u32 v3, v4, 3, v3")
    a.e(f"s_lshl_b32 {s(sT)}, {s(sV)}, 11")
    a.e(f"s_add_u32 {s(sT)}, {s(sT)}, {STG}")
    a.e(f"v_add_u32 v3, {s(sT)}, v3")
    for g in range(4): a.e(f"ds_write_b64 v3, {v(32+2*g,2)} offset:{16*g}")
    a.e(f"v_lshlrev_b32 v4, 4, v0")
    a.e(f"v_add_u32 v5, {s(sT)}, v4")
    a.e("s_waitcnt lgkmcnt(0)")
    a.e(f"ds_read_b128 v[40:43], v5")
    a.e(f"ds_read_b128 v[44:47], v5 offset:1024")
    chan_of_slot(a, sCH, sCS)
    a.e(f"s_lshl_b32 {s(sT2)}, {s(sCH)}, 12")
    a.e(f"s_lshl_b32 {s(sT3)}, {s(sUnit)}, 11")
    a.e(f"s_add_u32 {s(sT2)}, {s(sT2)}, {s(sT3)}")
    a.e(f"s_add_u32 {s(sT2)}, {s(sT2)}, {WS_YT}")
    a.e("s_waitcnt lgkmcnt(1)")
    a.e(f"buffer_store_dwordx4 v[40:43], v4, {s(SWS,4)}, {s(sT2)} offen sc1")
    a.e("s_waitcnt lgkmcnt(0)")
    a.e(f"buffer_store_dwordx4 v[44:47], v4, {s(SWS,4)}, {s(sT2)} offen offset:1024 sc1")
    a.lab(Lfin)
    a.e("s_waitcnt vmcnt(0)")
    a.e("s_barrier")
    dbg_off(a, sT2, "B3")
    global_arrive(a, 2, 3, sT2)

def finalA(a):
    a.c("==== B: y^T tile -> out[:, 0:640] ====")
    wait_counter(a, "B3", 32, 2, 3)
    def one():
        a.e(f"v_lshrrev_b32 v3, 3, v2")
        a.e(f"v_lshlrev_b32 v3, 12, v3")
        a.e(f"v_and_b32 v4, 7, v2")
        a.e(f"v_lshl_add_u32 v3, v4, 4, v3")
        a.e(f"buffer_load_dwordx4 v3, {s(SWS,4)}, {s(sT2)} offen sc1 lds")
    a.e(f"s_mul_i32 {s(sT2)}, {s(sC)}, {80*4096}")
    a.e(f"s_lshl_b32 {s(sT3)}, {s(sM)}, 7")
    a.e(f"s_add_u32 {s(sT2)}, {s(sT2)}, {s(sT3)}")
    a.e(f"s_add_u32 {s(sT2)}, {s(sT2)}, {WS_YT}")
    a.e(f"s_lshl_b32 {s(sT)}, {s(sV)}, 6")
    a.e(f"v_add_u32 v2, {s(sT)}, v0")
    a.e(f"s_lshl_b32 m0, {s(sV)}, 10")
    one()
    L = a.newlab("fa2")
    a.e(f"s_cmp_ge_u32 {s(sV)}, 2")
    a.e(f"s_cbranch_scc1 {L}")
    a.e(f"v_add_u32 v2, 512, v2")
    a.e(f"s_lshl_b32 {s(sT)}, {s(sV)}, 10")
    a.e(f"s_add_u32 m0, {s(sT)}, 8192")
    one()
    a.lab(L)
    def task(sreg):
        a.e(f"s_and_b32 {s(sT2)}, {s(sreg)}, 3")
        a.e(f"s_lshr_b32 {s(sT3)}, {s(sreg)}, 2")
        a.e(f"v_lshrrev_b32 v2, 4, v0")
        a.e(f"s_lshl_b32 {s(sT)}, {s(sT3)}, 2")
        a.e(f"v_add_u32 v2, {s(sT)}, v2")
        a.e(f"v_min_u32 v2, 9, v2")
        a.e(f"v_and_b32 v3, 15, v0")
        a.e(f"s_lshl_b32 {s(sT)}, {s(sM)}, 2")
        a.e(f"s_add_u32 {s(sT)}, {s(sT)}, {s(sT2)}")
        a.e(f"s_lshl_b32 {s(sT)}, {s(sT)}, 4")
        a.e(f"v_add_u32 v4, {s(sT)}, v3")
        a.e(f"v_mul_u32_u24 v5, 1280, v4")
        a.e(f"v_lshl_add_u32 v5, v2, 4, v5")
        a.e(f"s_mul_i32 {s(sT)}, {s(sC)}, 160")
        a.e(f"buffer_load_dwordx4 v[8:11], v5, {s(SU,4)}, {s(sT)} offen")
        a.e(f"v_lshlrev_b32 v6, 4, v2")
        a.e(f"v_add_u32 v6, {s(sT)}, v6")
        a.e(f"global_load_dwordx4 v[12:15], v6, {s(sPD,2)}")
        a.e(f"v_mul_u32_u24 v7, 2560, v4")
        a.e(f"v_lshl_add_u32 v7, v2, 4, v7")
        a.e(f"v_lshlrev_b32 v5, 3, v2")
        a.e(f"v_bfe_u32 v6, v0, 2, 2")
        a.e(f"v_add_u32 v5, v5, v6")
        a.e(f"v_lshlrev_b32 v5, 7, v5")
        a.e(f"v_and_b32 v6, 3, v0")
        a.e(f"v_lshl_add_u32 v5, v6, 3, v5")
        a.e(f"s_lshl_b32 {s(sT2)}, {s(sT2)}, 5")
        a.e(f"v_add_u32 v5, {s(sT2)}, v5")
        a.e(f"ds_read_b64_tr_b16 v[16:17], v5")
        a.e(f"ds_read_b64_tr_b16 v[18:19], v5 offset:512")
        a.e("s_waitcnt vmcnt(0) lgkmcnt(0)")
        for k in range(4):
            a.e(f"v_lshlrev_b32 v20, 16, {v(8+k)}")
            a.e(f"v_and_b32 v21, 0xffff0000, {v(8+k)}")
            a.e(f"v_lshlrev_b32 v22, 16, {v(12+k)}")
            a.e(f"v_and_b32 v23, 0xffff0000, {v(12+k)}")
            a.e(f"v_mul_f32 v20, v20, v22")
            a.e(f"v_mul_f32 v21, v21, v23")
            a.e(f"v_cvt_pk_bf16_f32 v20, v20, v21")
            a.e(f"v_and_b32 v21, 0xffff0000, v20")
            a.e(f"v_lshlrev_b32 v20, 16, v20")
            a.e(f"v_lshlrev_b32 v22, 16, {v(16+k)}")
            a.e(f"v_and_b32 v23, 0xffff0000, {v(16+k)}")
            a.e(f"v_add_f32 v20, v20, v22")
            a.e(f"v_add_f32 v21, v21, v23")
            a.e(f"v_cvt_pk_bf16_f32 {v(24+k)}, v20, v21")
        Lm = a.newlab("fam")
        a.e(f"s_cmp_eq_u32 {s(sT3)}, 2")
        a.e(f"s_cselect_b32 {s(sT2)}, 0, -1")
        a.e(f"s_mov_b32 exec_hi, {s(sT2)}")
        a.e(f"s_mul_i32 {s(sT)}, {s(sC)}, 160")
        a.e(f"buffer_store_dwordx4 v[24:27], v7, {s(SOUT,4)}, {s(sT)} offen")
        a.e("s_mov_b64 exec, -1")
    a.e("s_waitcnt vmcnt(0)")
    a.e("s_barrier")
    a.e(f"s_mov_b32 {s(sT4)}, {s(sV)}")
    task(sT4)
    L = a.newlab("fa3")
    a.e(f"s_cmp_ge_u32 {s(sV)}, 4")
    a.e(f"s_cbranch_scc1 {L}")
    a.nop(2)
    a.e(f"s_add_u32 {s(sT4)}, {s(sV)}, 8")
    task(sT4)
    a.lab(L)

def outproj(a):
    a.c("==== B: output projection ====")
    AR = 96
    a.e("s_barrier")
    W = [2, 3, 4]
    a.e(f"s_mul_i32 {s(sT2)}, {s(sV)}, 20480")
    a.e(f"s_mul_i32 {s(sT3)}, {s(sJ)}, 160")
    a.e(f"s_add_u32 {s(sT2)}, {s(sT2)}, {s(sT3)}")
    for i, r in enumerate(W):
        a.e(f"v_add_u32 v20, {64*i}, v0")
        a.e(f"v_mul_u32_u24 v21, 6554, v20")
        a.e(f"v_lshrrev_b32 v21, 16, v21")
        a.e(f"v_mul_u32_u24 v21, 1120, v21")
        a.e(f"v_lshl_add_u32 v21, v20, 4, v21")
        a.e(f"v_add_u32 {v(r)}, {s(sT2)}, v21")
    def dma128(row0, ldsbase):
        a.e(f"s_mov_b32 {s(sT3)}, {row0*1280}")
        a.e(f"s_mul_i32 {s(sT4)}, {s(sV)}, 2560")
        a.e(f"s_add_u32 m0, {s(sT4)}, {ldsbase}")
        a.e("s_nop 0")
        a.e(f"buffer_load_dwordx4 {v(W[0])}, {s(SWO,4)}, {s(sT3)} offen lds")
        a.e(f"s_add_u32 m0, {s(sT4)}, {ldsbase+1024}")
        a.e("s_nop 0")
        a.e(f"buffer_load_dwordx4 {v(W[1])}, {s(SWO,4)}, {s(sT3)} offen lds")
        a.e(f"s_add_u32 m0, {s(sT4)}, {ldsbase+2048}")
        a.e("s_mov_b32 exec_hi, 0")
        a.e(f"buffer_load_dwordx4 {v(W[2])}, {s(SWO,4)}, {s(sT3)} offen lds")
        a.e("s_mov_b32 exec_hi, -1")
    dma128(512, 0)
    a.e(f"v_lshrrev_b32 v5, 4, v0")
    a.e(f"v_lshlrev_b32 v5, 3, v5")
    a.e(f"v_bfe_u32 v6, v0, 2, 2")
    a.e(f"v_add_u32 v5, v5, v6")
    a.e(f"v_mul_u32_u24 v5, 160, v5")
    a.e(f"v_and_b32 v6, 3, v0")
    a.e(f"v_lshl_add_u32 v5, v6, 3, v5")
    a.e(f"s_lshr_b32 {s(sCS)}, {s(sV)}, 1")
    a.e(f"s_and_b32 {s(sUnit)}, {s(sV)}, 1")
    a.e(f"s_mul_i32 {s(sT)}, {s(sCS)}, {32*160}")
    a.e(f"v_add_u32 v6, {s(sT)}, v5")
    a.e("s_waitcnt vmcnt(0)")
    a.e("s_barrier")
    for mt in range(5):
        a.e(f"ds_read_b64_tr_b16 {v(AR+4*mt,2)}, v6 offset:{32*mt}")
        a.e(f"ds_read_b64_tr_b16 {v(AR+4*mt+2,2)}, v6 offset:{32*mt+640}")
    a.e("s_waitcnt lgkmcnt(0)")
    a.e("s_barrier")
    for blk in range(4):
        dma128(128 * blk, 20480 * blk)
    a.e(f"s_mul_i32 {s(sT)}, {s(sCS)}, 20480")
    a.e(f"v_add_u32 v6, {s(sT)}, v5")
    a.e(f"v_lshlrev_b32 v7, 4, v0")
    a.e(f"s_mul_i32 {s(sT3)}, {s(sQB)}, 81920")
    a.e(f"s_mul_i32 {s(sT4)}, {s(sUnit)}, 40960")
    a.e(f"s_add_u32 {s(sT3)}, {s(sT3)}, {s(sT4)}")
    a.e(f"s_add_u32 {s(sT3)}, {s(sT3)}, {WS_O}")
    a.e(f"s_lshl_b32 {s(sT4)}, {s(sCS)}, 12")
    a.e(f"s_add_u32 {s(sCH)}, {s(sT3)}, {s(sT4)}")
    a.e(f"s_lshl_b32 {s(sT4)}, {s(sCS)}, 10")
    a.e(f"s_add_u32 {s(sP5)}, {s(sT3)}, {s(sT4)}")
    a.e(f"s_add_u32 {s(sP5)}, {s(sP5)}, {16*1024}")
    a.e("s_waitcnt vmcnt(0)")
    stamp(a, 9)
    wait_counter(a, "B2", 8, 2, 3)
    stamp(a, 10)
    BF = 8
    for k in range(4):
        for n2 in range(2):
            if n2 == 0:
                a.e(f"buffer_load_dwordx4 {v(BF+4*(2*k),4)}, v7, {s(SWS,4)}, {s(sCH)} offen offset:{1024*k} sc1")
            else:
                a.e(f"s_add_u32 {s(sT)}, {s(sCH)}, 20480")
                a.e(f"buffer_load_dwordx4 {v(BF+4*(2*k+1),4)}, v7, {s(SWS,4)}, {s(sT)} offen offset:{1024*k} sc1")
    a.e(f"buffer_load_dwordx4 {v(BF+32,4)}, v7, {s(SWS,4)}, {s(sP5)} offen sc1")
    a.e(f"s_add_u32 {s(sT)}, {s(sP5)}, 20480")
    a.e(f"buffer_load_dwordx4 {v(BF+36,4)}, v7, {s(SWS,4)}, {s(sT)} offen sc1")
    acc = 48
    FA = [88, 92]
    first = True
    seq = [(k, mt) for k in range(4) for mt in range(5)]
    def rdA(i):
        k, mt = seq[i]; st = i % 2
        a.e(f"ds_read_b64_tr_b16 {v(FA[st],2)}, v6 offset:{k*32*160 + 32*mt}")
        a.e(f"ds_read_b64_tr_b16 {v(FA[st]+2,2)}, v6 offset:{k*32*160 + 32*mt + 640}")
    rdA(0)
    for i, (k, mt) in enumerate(seq):
        if i + 1 < len(seq):
            rdA(i + 1)
            a.e("s_waitcnt lgkmcnt(2)")
        else:
            a.e("s_waitcnt lgkmcnt(0)")
        if mt == 0:
            a.e(f"s_waitcnt vmcnt({10 - 2*(k+1)})")
        st = i % 2
        for n2 in range(2):
            d = acc + 8*mt + 4*n2
            cin = "0" if k == 0 else v(d, 4)
            a.e(f"v_mfma_f32_16x16x32_bf16 {v(d,4)}, {v(FA[st],4)}, {v(BF+4*(2*k+n2),4)}, {cin}")
    a.e("s_waitcnt vmcnt(0)")
    for mt in range(5):
        for n2 in range(2):
            d = acc + 8*mt + 4*n2
            a.e(f"v_mfma_f32_16x16x32_bf16 {v(d,4)}, {v(AR+4*mt,4)}, {v(BF+32+4*n2,4)}, {v(d,4)}")
    a.nop(10)
    a.e("s_barrier")
    a.e(f"s_lshl_b32 {s(sT)}, {s(sUnit)}, 2")
    a.e(f"s_add_u32 {s(sT)}, {s(sT)}, {s(sCS)}")
    a.e(f"s_mul_i32 {s(sT)}, {s(sT)}, 10240")
    a.e(f"v_add_u32 v2, {s(sT)}, v7")
    for t_ in range(10):
        a.e(f"ds_write_b128 v2, {v(acc+4*t_,4)} offset:{1024*t_}")
    a.e("s_waitcnt lgkmcnt(0)")
    a.e("s_barrier")
    a.e(f"s_mul_i32 {s(sT)}, {s(sUnit)}, 40960")
    a.e(f"s_lshl_b32 {s(sT2)}, {s(sCS)}, 10")
    a.e(f"s_add_u32 {s(sT)}, {s(sT)}, {s(sT2)}")
    a.e(f"v_add_u32 v2, {s(sT)}, v7")
    a.e(f"v_and_b32 v3, 15, v0")
    a.e(f"s_lshl_b32 {s(sT)}, {s(sQB)}, 1")
    a.e(f"s_add_u32 {s(sT)}, {s(sT)}, {s(sUnit)}")
    a.e(f"s_lshl_b32 {s(sT)}, {s(sT)}, 5")
    a.e(f"v_add_u32 v3, {s(sT)}, v3")
    a.e(f"v_mul_u32_u24 v3, 2560, v3")
    a.e(f"v_lshrrev_b32 v4, 4, v0")
    a.e(f"v_lshl_add_u32 v3, v4, 3, v3")
    a.e(f"s_mul_i32 {s(sT3)}, {s(sJ)}, 160")
    a.e(f"s_add_u32 {s(sT3)}, {s(sT3)}, 1280")
    for i in range(3):
        Ls = a.newlab("op_t")
        if i == 2:
            a.e(f"s_cmp_ge_u32 {s(sCS)}, 2")
            a.e(f"s_cbranch_scc1 {Ls}")
        for p in range(4):
            a.e(f"ds_read_b128 {v(8+4*p,4)}, v2 offset:{p*10240 + 4096*i}")
        a.e(f"s_add_u32 {s(sT)}, {s(sCS)}, {4*i}")
        a.e(f"s_lshr_b32 {s(sT2)}, {s(sT)}, 1")
        a.e(f"s_lshl_b32 {s(sT2)}, {s(sT2)}, 5")
        a.e(f"s_and_b32 {s(sT)}, {s(sT)}, 1")
        a.e(f"s_mul_i32 {s(sT)}, {s(sT)}, {16*2560}")
        a.e(f"s_add_u32 {s(sT)}, {s(sT)}, {s(sT2)}")
        a.e(f"s_add_u32 {s(sT)}, {s(sT)}, {s(sT3)}")
        a.e("s_waitcnt lgkmcnt(0)")
        for r in range(4):
            a.e(f"v_add_f32 {v(8+r)}, {v(8+r)}, {v(12+r)}")
            a.e(f"v_add_f32 {v(16+r)}, {v(16+r)}, {v(20+r)}")
        for r in range(4):
            a.e(f"v_add_f32 {v(8+r)}, {v(8+r)}, {v(16+r)}")
        a.e(f"v_cvt_pk_bf16_f32 v24, v8, v9")
        a.e(f"v_cvt_pk_bf16_f32 v25, v10, v11")
        a.e(f"buffer_store_dwordx2 v[24:25], v3, {s(SOUT,4)}, {s(sT)} offen")
        a.nop(2)
        if i == 2: a.lab(Ls)

def emit_B(a, opts):
    parts = opts.get("parts", "kv,ut,kg,conv,fin,op").split(",")
    stamp(a, 0)
    ids(a)
    a.e(f"v_mov_b32 v2, {L_CNT}")
    a.e(f"v_mov_b32 v3, 0")
    a.e(f"ds_write_b32 v2, v3")
    a.e("s_waitcnt lgkmcnt(0)")
    a.e("s_waitcnt lgkmcnt(0)")
    if "ut" in parts: u_tile_load(a)
    if "kg" in parts: kgen_loads(a)
    if "kv" in parts: kvproj(a)
    stamp(a, 1)
    if "ut" in parts or "kg" in parts:
        Lkg = a.newlab("role_kg"); Lj = a.newlab("role_join")
        a.e(f"s_cmp_lt_u32 {s(sV)}, 3")
        a.e(f"s_cbranch_scc1 {Lkg}")
        a.e("s_waitcnt vmcnt(0)")
        a.e("s_barrier")
        if "ut" in parts: u_transpose(a)
        a.e(f"s_branch {Lj}")
        a.lab(Lkg)
        a.e("s_waitcnt vmcnt(0)")
        a.e("s_barrier")
        if "kg" in parts: kgen(a)
        a.lab(Lj)
        a.e("s_barrier")
    stamp(a, 2)
    if "kg" in parts:
        expand(a)
    stamp(a, 3)
    if "conv" in parts:
        wait_counter(a, "B0", 32, 2, 3)
        stamp(a, 4)
        load_ut(a)
        stamp(a, 5)
        conv(a)
    stamp(a, 6)
    if "fin" in parts: finalA(a)
    stamp(a, 7)
    if "op" in parts: outproj(a)
    stamp(a, 11)
    stamp_flush(a, 12, SWS, sV, 2, 3)
```

```python
import sys
from common import *
import common
import typeA
HEADER = open("cdna_kernels/" + KNAME + ".s.ref").read().split("; Override launch geometry")[0]
def build(path, enableA=True, enableB=True, Bopts=None):
    a = Asm()
    K = KNAME + "_kernel"
    out = HEADER
    out += "; Two workgroups per CU: ids 0..255 = SSM / projections role, ids 256..511 = attention role.\n"
    out += f"; @launch grid=(512,1,1) block=(512,1,1) lds={LDS_BYTES}\n"
    out += '.amdgcn_target "amdgcn-amd-amdhsa--gfx950"\n.text\n'
    out += f".globl {K}\n.p2align 8\n.type {K},@function\n{K}:\n"
    a.e("s_cmp_ge_u32 s2, 512")
    a.e("s_cbranch_scc1 L_exit")
    a.e("s_cmp_lt_u32 s2, 256")
    a.e("s_cbranch_scc1 L_roleB")
    if enableA:
        typeA.emit_A(a)
    a.lab("L_exit")
    a.e("s_endpgm")
    a.L.append(".p2align 6")
    a.lab("L_roleB")
    if enableB:
        import typeB
        typeB.emit_B(a, Bopts or {})
    a.e("s_endpgm")
    out += a.text()
    out += f'''.section .rodata,"a"
.p2align 6
.amdhsa_kernel {K}
  .amdhsa_next_free_vgpr 128
  .amdhsa_next_free_sgpr 100
  .amdhsa_accum_offset 128
  .amdhsa_group_segment_fixed_size 0
  .amdhsa_kernarg_size 136
  .amdhsa_user_sgpr_count 2
  .amdhsa_user_sgpr_kernarg_segment_ptr 1
  .amdhsa_system_sgpr_workgroup_id_x 1
.end_amdhsa_kernel
'''
    open(path, "w").write(out)
if __name__ == "__main__":
    path = sys.argv[1]
    opts = dict(x.split("=") for x in sys.argv[2:])
    common.PROF = opts.get('PROF', '0') == '1'
    build(path, enableA=opts.get("A", "1") == "1", enableB=opts.get("B", "1") == "1", Bopts=opts)
```

```python
from asmlib import *
KNAME = "concat_heads__ssm_conv_s4__grouped_kv_mqa__prompt"
KA = dict(u=0, Are=8, Aim=16, Bre=24, Bim=32, Cre=40, Cim=48, ldt=56, Dskip=64, x=72, wq=80, wk=88, wv=96,
          wo=104, out=112, dbg=120, ws=128)
WS_KV = 0
WS_UT = 0x40000
WS_YT = 0x2C0000
WS_O  = 0x540000
WS_SIZE = 0x840000
XSIZE = 2048 * 640 * 2
WSIZE = 640 * 640 * 2
WKVSIZE = 640 * 20 * 2
PSIZE = 640 * 128 * 2
OUTSIZE = 2048 * 1280 * 2
SRD3 = 0x20000
LDS_BYTES = 81920
SPIN_MAX = 20000
WS_MB = 0x30000
MB_NONCE = WS_MB
MB_B0 = WS_MB + 0x1000
MB_B3 = WS_MB + 0x3000
MB_B1 = WS_MB + 0x5000
MB_B2 = WS_MB + 0x8000
KMAX_OFF = 1536 + 22*16
def DBG_B1(sh): return 64 * sh
DBG_KMAX = 4
def f32bits(x):
    import struct
    return struct.unpack("<I", struct.pack("<f", x))[0]
def hexf(x): return "0x%08x" % f32bits(x)

def srd(a, sreg, ka_name, size):
    a.e(f"s_load_dwordx2 {s(sreg,2)}, s[0:1], {KA[ka_name]}")
def srd_fin(a, sreg, size):
    a.e(f"s_mov_b32 {s(sreg+2)}, {size}")
    a.e(f"s_mov_b32 {s(sreg+3)}, 0x20000")

def poll_flags(a, ws_srd, vaddr, vtmp, snonce, lanes_mask, scnt, smask, name, sleep=4, slow=0):
    L = a.newlab("poll_" + name); Lo = a.newlab("pollout_" + name); Lf = a.newlab("pollfast_" + name)
    a.e(f"s_mov_b32 {s(scnt)}, 0")
    a.lab(L)
    a.e(f"buffer_load_dword {v(vtmp)}, {v(vaddr)}, {s(ws_srd,4)}, 0 offen sc1")
    a.e(f"s_add_u32 {s(scnt)}, {s(scnt)}, 1")
    a.e("s_waitcnt vmcnt(0)")
    a.e(f"v_cmp_ne_u32 {s(smask,2)}, {s(snonce)}, {v(vtmp)}")
    a.nop(2)
    full = (1 << 64) - 1
    if lanes_mask != full:
        lo, hi = lanes_mask & 0xffffffff, lanes_mask >> 32
        a.e(f"s_and_b32 {s(smask)}, {s(smask)}, {hex(lo)}")
        a.e(f"s_and_b32 {s(smask+1)}, {s(smask+1)}, {hex(hi)}")
    a.e(f"s_cmp_eq_u64 {s(smask,2)}, 0")
    a.e(f"s_cbranch_scc1 {Lo}")
    a.e(f"s_cmp_gt_u32 {s(scnt)}, {SPIN_MAX}")
    a.e(f"s_cbranch_scc1 {Lo}")
    if slow:
        a.e(f"s_bcnt1_i32_b64 {s(smask)}, {s(smask,2)}")
        a.e(f"s_cmp_lt_u32 {s(smask)}, {bin(lanes_mask).count('1')}")
        a.e(f"s_cbranch_scc1 {Lf}")
        a.e(f"s_sleep {slow}")
        a.e(f"s_branch {L}")
        a.lab(Lf)
    if sleep: a.e(f"s_sleep {sleep}")
    a.e(f"s_branch {L}")
    a.lab(Lo)

def nonce_issue(a, dbg_srd, vz, vn):
    a.e(f"v_mov_b32 {v(vz)}, 0")
    a.e(f"buffer_load_dword {v(vn)}, {v(vz)}, {s(dbg_srd,4)}, 0 offen sc1")
def nonce_get(a, dbg_srd, vz, vn, snonce, scnt):
    L = a.newlab("nonce"); Lo = a.newlab("nonce_ok")
    a.e(f"s_mov_b32 {s(scnt)}, 0")
    a.lab(L)
    a.e(f"v_readfirstlane_b32 {s(snonce)}, {v(vn)}")
    a.nop(2)
    a.e(f"s_cmp_lg_u32 {s(snonce)}, 0")
    a.e(f"s_cbranch_scc1 {Lo}")
    a.e(f"s_add_u32 {s(scnt)}, {s(scnt)}, 1")
    a.e(f"s_cmp_gt_u32 {s(scnt)}, {SPIN_MAX}")
    a.e(f"s_cbranch_scc1 {Lo}")
    a.e("s_sleep 4")
    a.e(f"v_mov_b32 {v(vz)}, 0")
    a.e(f"buffer_load_dword {v(vn)}, {v(vz)}, {s(dbg_srd,4)}, 0 offen sc1")
    a.e("s_waitcnt vmcnt(0)")
    a.e(f"s_branch {L}")
    a.lab(Lo)
def flag_store(a, ws_srd, soff, snonce, vt0, vt1, lanes=1, lane_stride=0):
    if lanes == 1:
        a.e(f"v_mov_b32 {v(vt0)}, 0")
    else:
        a.e(f"v_mul_u32_u24 {v(vt0)}, {lane_stride}, v0")
    a.e(f"v_mov_b32 {v(vt1)}, {s(snonce)}")
    a.e(f"s_mov_b64 exec, {hex((1 << lanes) - 1)}")
    a.e(f"buffer_store_dword {v(vt1)}, {v(vt0)}, {s(ws_srd,4)}, {s(soff)} offen sc1")
    a.e("s_mov_b64 exec, -1")

def code_prefetch(a, kstart, kend_label, vt0, vt1, stmp):
    L = a.newlab("pc")
    a.e(f"s_getpc_b64 {s(stmp,2)}")
    a.lab(L)
    a.e(f"s_sub_u32 {s(stmp)}, {s(stmp)}, {L}-{kstart}")
    a.e(f"s_subb_u32 {s(stmp+1)}, {s(stmp+1)}, 0")
    a.e(f"s_lshr_b32 {s(stmp+2)}, s2, 3")
    a.e(f"s_lshl_b32 {s(stmp+2)}, {s(stmp+2)}, 9")
    a.e(f"v_and_b32 {v(vt0)}, 7, v0")
    a.e(f"v_lshlrev_b32 {v(vt0)}, 6, {v(vt0)}")
    a.e(f"v_add_u32 {v(vt0)}, {s(stmp+2)}, {v(vt0)}")
    a.e(f"v_min_u32 {v(vt0)}, {kend_label}-{kstart}-4, {v(vt0)}")
    a.e(f"global_load_dword {v(vt1)}, {v(vt0)}, {s(stmp,2)}")

PROF = False
WS_PROF = 0x7C0000
PROF_S0 = 60
def stamp(a, i, cyc=False):
    import common
    if not common.PROF: return
    a.e(f"{'s_memtime' if cyc else 's_memrealtime'} s[98:99]")
    a.e("s_waitcnt lgkmcnt(0)")
    a.e(f"s_mov_b32 {s(PROF_S0+i)}, s98")
def stamp_flush(a, n, ws_srd, swave, vt0, vt1):
    import common
    if not common.PROF: return
    a.e(f"s_lshl_b32 s59, s2, 3")
    a.e(f"s_add_u32 s59, s59, {s(swave)}")
    a.e(f"s_lshl_b32 s59, s59, 7")
    a.e(f"s_add_u32 s59, s59, {WS_PROF}")
    a.e(f"v_mov_b32 {v(vt0)}, 0")
    for i in range(n):
        a.e(f"v_mov_b32 {v(vt1)}, {s(PROF_S0+i)}")
        a.e(f"buffer_store_dword {v(vt1)}, {v(vt0)}, {s(ws_srd,4)}, s59 offen offset:{4*i}")
        a.e("s_nop 1")
    a.e("s_waitcnt vmcnt(0)")
```

```python
from common import *
import common
import math
sW, sC, sM, sV, sT = 3, 4, 5, 6, 7
SX, SWQ, SWS, SDBG = 8, 12, 16, 20
sQB, sJ, sGH, sNT = 24, 25, 26, 27
sMX, sMW, sCX, sCW = 28, 29, 30, 31
sT2, sT3 = 32, 33
sPM = 34
sPC = 36
sChunk, sSlotN, sSlotD, sMKV, sKVoff = 37, 38, 39, 40, 41
sRetry = 42
sNonce = 43
sEx = 44
vL = 0
vX0, vX1, vW0, vW1, vW2 = 2, 3, 4, 5, 6
vPF = 7
vXA = 8
vWA = 16
vO = 16
vS0, vS1 = 32, 48
vP = 64
vQ1, vQ2 = 72, 76
KV = [dict(K1=80, V1=84, V2=88, K2=92), dict(K1=94, V1=98, V2=102, K2=106)]
aK1c, aK1n, aK2c, aK2n, aVc, aVn = 108, 109, 110, 111, 112, 113
vDMA = 114
vN2 = 115
vT0, vT1, vT2, vT3 = 116, 117, 118, 119
vLK1, vLK2, vLV = 120, 121, 122
vZ = 123
vNC = 124
OPT = {}
QBUF = 36864
CHUNK = 24576
LDS_FLAGS = 73728
OROW = 176

def ids(a):
    a.e(f"s_and_b32 {s(sW)}, s2, 255")
    srd(a, SX, "x", 0); srd(a, SWQ, "wq", 0); srd(a, SWS, "ws", 0); srd(a, SDBG, "dbg", 0)
    a.e(f"v_lshrrev_b32 v1, 6, v0")
    a.e(f"s_and_b32 {s(sC)}, {s(sW)}, 7")
    a.e(f"s_lshr_b32 {s(sM)}, {s(sW)}, 3")
    a.e(f"v_readfirstlane_b32 {s(sV)}, v1")
    a.e(f"v_and_b32 v0, 63, v0")
    a.e(f"s_lshr_b32 {s(sT)}, {s(sM)}, 3")
    a.e(f"s_lshl_b32 {s(sT)}, {s(sT)}, 3")
    a.e(f"s_add_u32 {s(sQB)}, {s(sT)}, {s(sC)}")
    a.e(f"s_and_b32 {s(sJ)}, {s(sM)}, 7")
    a.e(f"s_and_b32 {s(sGH)}, {s(sV)}, 3")
    a.e(f"s_lshr_b32 {s(sNT)}, {s(sV)}, 2")
    for r, sz in ((SX, XSIZE), (SWQ, WSIZE), (SWS, WS_SIZE), (SDBG, 256)):
        srd_fin(a, r, sz)

def qproj_dma(a, c, buf):
    a.e(f"s_mov_b32 {s(sCX)}, {c*256}")
    a.e(f"s_mov_b32 {s(sCW)}, {c*163840}")
    b = buf * QBUF
    a.e(f"s_add_u32 m0, {s(sMX)}, {b}")
    a.e("s_nop 0")
    a.e(f"buffer_load_dwordx4 {v(vX0)}, {s(SX,4)}, {s(sCX)} offen lds")
    a.e(f"s_add_u32 m0, {s(sMX)}, {b+1024}")
    a.e("s_nop 0")
    a.e(f"buffer_load_dwordx4 {v(vX1)}, {s(SX,4)}, {s(sCX)} offen lds")
    a.e(f"s_add_u32 m0, {s(sMW)}, {b}")
    a.e("s_nop 0")
    a.e(f"buffer_load_dwordx4 {v(vW0)}, {s(SWQ,4)}, {s(sCW)} offen lds")
    a.e(f"s_add_u32 m0, {s(sMW)}, {b+1024}")
    a.e("s_nop 0")
    a.e(f"buffer_load_dwordx4 {v(vW1)}, {s(SWQ,4)}, {s(sCW)} offen lds")
    a.e(f"s_add_u32 m0, {s(sMW)}, {b+2048}")
    a.e("s_mov_b32 exec_hi, 0")
    a.e(f"buffer_load_dwordx4 {v(vW2)}, {s(SWQ,4)}, {s(sCW)} offen lds")
    a.e("s_mov_b32 exec_hi, -1")

def qproj(a):
    a.c("==== A: q projection ====")
    a.e(f"v_lshrrev_b32 v20, 4, v0")
    a.e(f"v_and_b32 v21, 15, v0")
    a.e(f"s_and_b32 {s(sT)}, {s(sV)}, 1")
    a.e(f"s_lshl_b32 {s(sT)}, {s(sT)}, 3")
    a.e(f"v_add_u32 v22, {s(sT)}, v20")
    a.e(f"v_mul_u32_u24 v23, 1280, v20")
    a.e(f"s_lshl_b32 {s(sT2)}, {s(sQB)}, 3")
    a.e(f"s_add_u32 {s(sT2)}, {s(sT2)}, {s(sV)}")
    a.e(f"s_mul_i32 {s(sT2)}, {s(sT2)}, {8*1280}")
    a.e(f"v_xor_b32 v24, v21, v22")
    a.e(f"v_lshl_add_u32 v24, v24, 4, v23")
    a.e(f"v_add_u32 {v(vX0)}, {s(sT2)}, v24")
    a.e(f"v_add_u32 v22, 4, v22")
    a.e(f"v_xor_b32 v24, v21, v22")
    a.e(f"v_lshl_add_u32 v24, v24, 4, v23")
    a.e(f"s_add_u32 {s(sT2)}, {s(sT2)}, 5120")
    a.e(f"v_add_u32 {v(vX1)}, {s(sT2)}, v24")
    a.e(f"s_mul_i32 {s(sT2)}, {s(sV)}, 20480")
    a.e(f"s_mul_i32 {s(sT3)}, {s(sJ)}, 160")
    a.e(f"s_add_u32 {s(sT2)}, {s(sT2)}, {s(sT3)}")
    for i, r in enumerate((vW0, vW1, vW2)):
        a.e(f"v_add_u32 v20, {64*i}, v0")
        a.e(f"v_mul_u32_u24 v21, 6554, v20")
        a.e(f"v_lshrrev_b32 v21, 16, v21")
        a.e(f"v_mul_u32_u24 v21, 1120, v21")
        a.e(f"v_lshl_add_u32 v21, v20, 4, v21")
        a.e(f"v_add_u32 {v(r)}, {s(sT2)}, v21")
    a.e(f"s_lshl_b32 {s(sMX)}, {s(sV)}, 11")
    a.e(f"s_mul_i32 {s(sMW)}, {s(sV)}, 2560")
    a.e(f"s_add_u32 {s(sMW)}, {s(sMW)}, 16384")
    a.e("s_waitcnt lgkmcnt(0)")
    stamp(a, 15)
    qproj_dma(a, 0, 0)
    stamp(a, 16)
    if OPT.get("c1late") != "1": qproj_dma(a, 1, 1)
    Lw = a.newlab("pfw"); Ld = a.newlab("pfd")
    a.e(f"s_cmp_lt_u32 {s(sV)}, 2")
    a.e(f"s_cbranch_scc0 {Lw}")
    a.e(f"s_lshl_b32 {s(sT)}, {s(sV)}, 6")
    a.e(f"v_add_u32 v20, {s(sT)}, v0")
    a.e(f"v_min_u32 v20, 95, v20")
    a.e(f"v_mul_u32_u24 v21, 5462, v20")
    a.e(f"v_lshrrev_b32 v21, 16, v21")
    a.e(f"v_mul_u32_u24 v22, 12, v21")
    a.e(f"v_sub_u32 v22, v20, v22")
    a.e(f"v_mul_u32_u24 v21, 1280, v21")
    a.e(f"v_lshl_add_u32 v21, v22, 6, v21")
    a.e(f"s_lshl_b32 {s(sT2)}, {s(sQB)}, 3")
    a.e(f"s_add_u32 {s(sT2)}, {s(sT2)}, {s(sJ)}")
    a.e(f"s_mul_i32 {s(sT2)}, {s(sT2)}, {8*1280}")
    a.e(f"s_add_u32 {s(sT2)}, {s(sT2)}, 512")
    a.e(f"v_add_u32 v21, {s(sT2)}, v21")
    a.e(f"buffer_load_dword {v(vPF)}, v21, {s(SX,4)}, 0 offen")
    a.e(f"s_branch {Ld}")
    a.lab(Lw)
    a.e(f"s_sub_u32 {s(sT)}, {s(sV)}, 2")
    a.e(f"s_lshl_b32 {s(sT)}, {s(sT)}, 6")
    a.e(f"v_add_u32 v20, {s(sT)}, v0")
    a.e(f"v_min_u32 v20, 287, v20")
    a.e(f"v_mul_u32_u24 v21, 21846, v20")
    a.e(f"v_lshrrev_b32 v21, 16, v21")
    a.e(f"v_mul_u32_u24 v22, 3, v21")
    a.e(f"v_sub_u32 v22, v20, v22")
    a.e(f"v_mul_u32_u24 v21, 1280, v21")
    a.e(f"v_lshl_add_u32 v21, v22, 6, v21")
    a.e(f"s_lshr_b32 {s(sT2)}, {s(sQB)}, 3")
    a.e(f"s_mul_i32 {s(sT2)}, {s(sT2)}, 96")
    a.e(f"s_add_u32 {s(sT2)}, {s(sT2)}, 256")
    a.e(f"s_mul_i32 {s(sT2)}, {s(sT2)}, 1280")
    a.e(f"s_mul_i32 {s(sT3)}, {s(sJ)}, 160")
    a.e(f"s_and_b32 {s(sT3)}, {s(sT3)}, 0xffffffc0")
    a.e(f"s_add_u32 {s(sT2)}, {s(sT2)}, {s(sT3)}")
    a.e(f"v_add_u32 v21, {s(sT2)}, v21")
    a.e(f"buffer_load_dword {v(vPF)}, v21, {s(SWQ,4)}, 0 offen")
    a.lab(Ld)
    a.e(f"v_and_b32 v20, 31, v0")
    a.e(f"s_lshl_b32 {s(sT)}, {s(sNT)}, 5")
    a.e(f"v_add_u32 v20, {s(sT)}, v20")
    a.e(f"v_lshlrev_b32 v20, 8, v20")
    a.e(f"v_lshrrev_b32 v21, 5, v0")
    a.e(f"v_and_b32 v22, 15, v0")
    a.e(f"v_xor_b32 v21, v21, v22")
    for k in range(8):
        a.e(f"v_xor_b32 v22, {2*k}, v21")
        a.e(f"v_lshl_add_u32 {v(vXA+k)}, v22, 4, v20")
    a.e(f"v_lshrrev_b32 v20, 5, v0")
    a.e(f"v_lshlrev_b32 v20, 3, v20")
    a.e(f"v_lshrrev_b32 v21, 2, v0")
    a.e(f"v_and_b32 v21, 3, v21")
    a.e(f"v_add_u32 v20, v20, v21")
    a.e(f"v_mul_u32_u24 v20, 160, v20")
    a.e(f"v_bfe_u32 v21, v0, 4, 1")
    a.e(f"v_lshl_add_u32 v20, v21, 5, v20")
    a.e(f"v_and_b32 v21, 3, v0")
    a.e(f"v_lshl_add_u32 v20, v21, 3, v20")
    a.e(f"s_mul_i32 {s(sT)}, {s(sGH)}, 40")
    a.e(f"s_add_u32 {s(sT)}, {s(sT)}, 16384")
    a.e(f"v_add_u32 {v(vWA)}, {s(sT)}, v20")
    FA = [48, 56]; FB = [52, 60]
    acc = vS0
    def reads(ks, buf, st):
        b = buf * QBUF
        a.e(f"ds_read_b64_tr_b16 {v(FA[st],2)}, {v(vWA)} offset:{b + ks*2560}")
        a.e(f"ds_read_b64_tr_b16 {v(FA[st]+2,2)}, {v(vWA)} offset:{b + ks*2560 + 640}")
        a.e(f"ds_read_b128 {v(FB[st],4)}, {v(vXA+ks)} offset:{b}")
    if OPT.get("c1late") == "1":
        a.e("s_waitcnt vmcnt(1)")
        a.e("s_barrier")
        stamp(a, 1)
        qproj_dma(a, 1, 1)
    else:
        a.e("s_waitcnt vmcnt(6)")
        a.e("s_barrier")
        stamp(a, 1)
    for c in range(5):
        buf = c % 2
        reads(0, buf, 0)
        for ks in range(8):
            st = ks % 2
            if ks < 7:
                reads(ks + 1, buf, 1 - st)
                a.e("s_waitcnt lgkmcnt(3)")
            else:
                a.e("s_waitcnt lgkmcnt(0)")
            cin = "0" if (c == 0 and ks == 0) else v(acc, 16)
            a.e(f"v_mfma_f32_32x32x16_bf16 {v(acc,16)}, {v(FA[st],4)}, {v(FB[st],4)}, {cin}")
        if c < 4:
            if c == 0 and OPT.get("c1late") != "1":
                a.e("s_waitcnt vmcnt(1)")
            else:
                a.e("s_waitcnt vmcnt(0)")
            a.e("s_barrier")
            stamp(a, 11 + c)
            if c + 2 < 5:
                qproj_dma(a, c + 2, buf)
            if c == 1:
                nonce_issue(a, SDBG, vZ, vNC)
    a.nop(12)
    cs = math.log2(math.e) / math.sqrt(20.0)
    a.e(f"s_mov_b32 {s(sT)}, {hexf(cs)}")
    for r in range(12):
        a.e(f"v_mul_f32 {v(acc+r)}, {s(sT)}, {v(acc+r)}")
    a.e("s_mov_b32 exec_lo, 0")
    for r in range(8, 12):
        a.e(f"v_mov_b32 {v(acc+r)}, 0")
    a.e("s_mov_b32 exec_lo, -1")
    a.e(f"v_mul_f32 {v(vN2)}, {v(acc)}, {v(acc)}")
    for r in range(1, 12):
        a.e(f"v_fmac_f32 {v(vN2)}, {v(acc+r)}, {v(acc+r)}")
    for i in range(4):
        a.e(f"v_cvt_pk_bf16_f32 {v(vQ1+i)}, {v(acc+2*i)}, {v(acc+2*i+1)}")
    for i in range(2):
        a.e(f"v_cvt_pk_bf16_f32 {v(vQ2+i)}, {v(acc+8+2*i)}, {v(acc+9+2*i)}")
    a.e(f"v_mov_b32 {v(vT0)}, {v(vN2)}")
    a.nop(2)
    a.e(f"v_permlane32_swap_b32 {v(vN2)}, {v(vT0)}")
    a.nop(1)
    a.e(f"v_add_f32 {v(vN2)}, {v(vN2)}, {v(vT0)}")

def kv_dma(a, chunk_sreg, slot_sreg):
    a.e(f"s_add_u32 m0, {s(slot_sreg)}, {s(sMKV)}")
    a.e("s_nop 0")
    for i in range(3):
        a.e(f"buffer_load_dwordx4 {v(vDMA)}, {s(SWS,4)}, {s(chunk_sreg)} offen offset:{i*1024} sc1 lds")

def wait_b1(a):
    a.c("==== A: wait for K/V ====")
    nonce_get(a, SDBG, vZ, vNC, sNonce, sPC)
    Ls = a.newlab("nopoll")
    a.e(f"s_cmp_lg_u32 {s(sV)}, 0")
    a.e(f"s_cbranch_scc1 {Ls}")
    a.e(f"s_lshl_b32 {s(sT)}, {s(sC)}, 10")
    a.e(f"s_add_u32 {s(sT)}, {s(sT)}, {MB_B1}")
    a.e(f"v_lshlrev_b32 {v(vT0)}, 2, v0")
    a.e(f"v_add_u32 {v(vT0)}, {s(sT)}, {v(vT0)}")
    poll_flags(a, SWS, vT0, vT1, sNonce, (1 << 64) - 1, sPC, sPM, "b1", sleep=int(OPT.get("slp1", 4)))
    a.lab(Ls)
    a.e("s_barrier")

def tile(a, jj, mode="main"):
    Sa = vS0 if jj % 2 == 0 else vS1
    Sb = vS1 if jj % 2 == 0 else vS0
    cur = KV[jj % 2]; nx = KV[(jj + 1) % 2]
    if OPT.get("prio") == "alt":
        pass
    def G(i0):
        for i in range(i0, i0 + 4):
            a.e(f"v_exp_f32 {v(Sa+i)}, {v(Sa+i)}")
        a.e(f"v_cvt_pk_bf16_f32 {v(vP+i0//2)}, {v(Sa+i0)}, {v(Sa+i0+1)}")
        a.e(f"v_cvt_pk_bf16_f32 {v(vP+i0//2+1)}, {v(Sa+i0+2)}, {v(Sa+i0+3)}")
    def addr(cn, nn, blk):
        return (cn, blk * 3072) if blk < 8 else (nn, (blk - 8) * 3072)
    if jj == 6:
        a.e("s_waitcnt vmcnt(0) lgkmcnt(0)")
        if OPT.get("nobar") != "1": a.e("s_barrier")
        Lsk = a.newlab("nodma")
        a.e(f"s_cmp_ge_u32 {s(sChunk)}, 6")
        a.e(f"s_cbranch_scc1 {Lsk}")
        a.e(f"s_add_u32 {s(sT)}, {s(sChunk)}, 2")
        a.e(f"s_mul_i32 {s(sT)}, {s(sT)}, {CHUNK}")
        kv_dma(a, sT, sSlotD)
        a.lab(Lsk)
    else:
        a.e("s_waitcnt lgkmcnt(0)")
    a.e(f"v_mfma_f32_32x32x16_bf16 {v(Sb,16)}, {v(cur['K1'],4)}, {v(vQ1,4)}, 0")
    r, o = addr(aK1c, aK1n, jj + 2)
    a.e(f"ds_read_b128 {v(nx['K1'],4)}, {v(r)} offset:{o}")
    r, o = addr(aK2c, aK2n, jj + 2)
    a.e(f"ds_read_b64 {v(nx['K2'],2)}, {v(r)} offset:{o}")
    G(0)
    a.e(f"v_mfma_f32_32x32x16_bf16 {v(vO,16)}, {v(cur['V2'],4)}, {v(vP+4,4)}, {v(vO,16)}")
    a.e(f"ds_read_b128 {v(nx['V2'],4)}, {v(aVc)} offset:{jj*3072 + 768}")
    r, o = addr(aVc, aVn, jj + 1)
    a.e(f"ds_read_b128 {v(nx['V1'],4)}, {v(r)} offset:{o}")
    G(4)
    a.e(f"v_mfma_f32_32x32x8_bf16 {v(Sb,16)}, {v(cur['K2'],2)}, {v(vQ2,2)}, {v(Sb,16)}")
    G(8)
    a.e(f"v_mfma_f32_32x32x16_bf16 {v(vO,16)}, {v(cur['V1'],4)}, {v(vP,4)}, {v(vO,16)}")
    G(12)

def attention(a, warm=True):
    a.c("==== A: attention ====")
    Lstart = a.newlab("attn_start")
    a.e(f"v_lshlrev_b32 {v(vLK1)}, 4, v0")
    a.e(f"v_lshlrev_b32 {v(vLK2)}, 3, v0")
    a.e(f"v_add_u32 {v(vLK2)}, 1024, {v(vLK2)}")
    a.e(f"v_and_b32 {v(vT0)}, 31, v0")
    a.e(f"v_min_u32 {v(vT0)}, 23, {v(vT0)}")
    a.e(f"v_lshrrev_b32 {v(vT1)}, 5, v0")
    a.e(f"v_mul_u32_u24 {v(vT1)}, 24, {v(vT1)}")
    a.e(f"v_add_u32 {v(vT0)}, {v(vT0)}, {v(vT1)}")
    a.e(f"v_lshlrev_b32 {v(vLV)}, 4, {v(vT0)}")
    a.e(f"v_add_u32 {v(vLV)}, 1536, {v(vLV)}")
    a.e(f"s_mul_i32 {s(sMKV)}, {s(sV)}, 3072")
    a.e(f"v_lshlrev_b32 {v(vDMA)}, 4, v0")
    a.e(f"v_add_u32 {v(vDMA)}, {s(sMKV)}, {v(vDMA)}")
    if WS_KV: a.e(f"v_add_u32 {v(vDMA)}, {WS_KV}, {v(vDMA)}")
    a.e(f"v_mov_b32 {v(vZ)}, 0")
    a.e(f"s_mov_b32 {s(sRetry)}, 0")
    a.e(f"v_mul_u32_u24 {v(vT3)}, 3072, v0")
    a.e(f"buffer_load_dword {v(vT3)}, {v(vT3)}, {s(SWS,4)}, 0 offen offset:{WS_KV + KMAX_OFF} sc1")
    a.lab(Lstart)
    a.e(f"s_mov_b32 {s(sT2)}, 0")
    a.e(f"s_mov_b32 {s(sT3)}, {CHUNK}")
    kv_dma(a, sT2, sT2)
    kv_dma(a, sT3, sT3)
    Lnom = a.newlab("nom")
    a.e(f"s_cmp_lg_u32 {s(sRetry)}, 0")
    a.e(f"s_cbranch_scc1 {Lnom}")
    a.e("s_waitcnt vmcnt(6)")
    for d in ("row_shr:1", "row_shr:2", "row_shr:4", "row_shr:8", "row_bcast:15 row_mask:0xa", "row_bcast:31 row_mask:0xc"):
        a.e(f"v_max_f32_dpp {v(vT3)}, {v(vT3)}, {v(vT3)} {d}" + ("" if "row_mask" in d else " row_mask:0xf") + " bank_mask:0xf")
        a.nop(2)
    a.e(f"v_readlane_b32 {s(sT)}, {v(vT3)}, 63")
    a.nop(2)
    a.e(f"v_mul_f32 {v(vT0)}, {s(sT)}, {v(vN2)}")
    a.e(f"v_sqrt_f32 {v(vT0)}, {v(vT0)}")
    a.e(f"s_mov_b32 {s(sT)}, {hexf(1.02)}")
    a.nop(1)
    a.e(f"v_mul_f32 {v(vT0)}, {s(sT)}, {v(vT0)}")
    a.e(f"v_cvt_pk_bf16_f32 {v(vT1)}, -{v(vT0)}, 0")
    a.e("s_mov_b32 exec_lo, 0")
    a.e(f"v_mov_b32 {v(vQ2)}, {v(vT1)}")
    a.e("s_mov_b32 exec_lo, -1")
    a.lab(Lnom)
    for r in range(16):
        a.e(f"v_mov_b32 {v(vO+r)}, 0")
    for r in range(4, 8):
        a.e(f"v_mov_b32 {v(vP+r)}, 0")
    a.e(f"v_mov_b32 {v(aK1c)}, {v(vLK1)}")
    a.e(f"v_mov_b32 {v(aK2c)}, {v(vLK2)}")
    a.e(f"v_mov_b32 {v(aVc)}, {v(vLV)}")
    a.e(f"v_add_u32 {v(aK1n)}, {CHUNK}, {v(vLK1)}")
    a.e(f"v_add_u32 {v(aK2n)}, {CHUNK}, {v(vLK2)}")
    a.e(f"v_add_u32 {v(aVn)}, {CHUNK}, {v(vLV)}")
    a.e(f"s_mov_b32 {s(sChunk)}, 0")
    a.e(f"s_mov_b32 {s(sSlotD)}, {2*CHUNK}")
    a.e("s_waitcnt vmcnt(3)")
    a.e("s_barrier")
    stamp(a, 4)
    stamp(a, 9, True)
    a.e(f"ds_read_b128 {v(KV[1]['K1'],4)}, {v(aK1c)}")
    a.e(f"ds_read_b64 {v(KV[1]['K2'],2)}, {v(aK2c)}")
    a.e(f"ds_read_b128 {v(KV[0]['K1'],4)}, {v(aK1c)} offset:3072")
    a.e(f"ds_read_b64 {v(KV[0]['K2'],2)}, {v(aK2c)} offset:3072")
    a.e(f"ds_read_b128 {v(KV[0]['V2'],4)}, {v(aVc)} offset:768")
    a.e(f"ds_read_b128 {v(KV[0]['V1'],4)}, {v(aVc)}")
    a.e("s_waitcnt lgkmcnt(4)")
    a.e(f"v_mfma_f32_32x32x16_bf16 {v(vS0,16)}, {v(KV[1]['K1'],4)}, {v(vQ1,4)}, 0")
    a.e(f"v_mfma_f32_32x32x8_bf16 {v(vS0,16)}, {v(KV[1]['K2'],2)}, {v(vQ2,2)}, {v(vS0,16)}")
    a.nop(12)
    Lloop = a.newlab("chunk")
    if OPT.get("prio") == "hi":
        Lp = a.newlab("prio")
        a.e(f"s_cmp_lt_u32 {s(sV)}, 4")
        a.e(f"s_cbranch_scc1 {Lp}")
        a.e("s_setprio 1")
        a.lab(Lp)
    if OPT.get("prio") == "all": a.e("s_setprio 2")
    a.L.append(".p2align 6")
    a.lab(Lloop)
    for jj in range(8):
        tile(a, jj)
    a.e(f"v_mov_b32 {v(aK1c)}, {v(aK1n)}")
    a.e(f"v_mov_b32 {v(aK2c)}, {v(aK2n)}")
    a.e(f"v_mov_b32 {v(aVc)}, {v(aVn)}")
    a.e(f"v_add_u32 {v(aK1n)}, {s(sSlotD)}, {v(vLK1)}")
    a.e(f"v_add_u32 {v(aK2n)}, {s(sSlotD)}, {v(vLK2)}")
    a.e(f"v_add_u32 {v(aVn)}, {s(sSlotD)}, {v(vLV)}")
    a.e(f"s_add_u32 {s(sSlotD)}, {s(sSlotD)}, {CHUNK}")
    a.e(f"s_cmp_ge_u32 {s(sSlotD)}, {3*CHUNK}")
    a.e(f"s_cselect_b32 {s(sSlotD)}, 0, {s(sSlotD)}")
    a.e(f"s_add_u32 {s(sChunk)}, {s(sChunk)}, 1")
    a.e(f"s_cmp_lt_u32 {s(sChunk)}, 8")
    a.e(f"s_cbranch_scc1 {Lloop}")
    a.e("s_waitcnt lgkmcnt(0)")
    a.e(f"v_mfma_f32_32x32x16_bf16 {v(vO,16)}, {v(KV[0]['V2'],4)}, {v(vP+4,4)}, {v(vO,16)}")
    a.nop(12)
    a.e(f"v_mov_b32 {v(vT0)}, {v(vO+8)}")
    a.e(f"v_mov_b32 {v(vT1)}, {v(vO+8)}")
    a.nop(2)
    a.e(f"v_permlane32_swap_b32 {v(vT0)}, {v(vT1)}")
    a.nop(1)
    return Lstart

def safety_vote(a, Lstart):
    Lok = a.newlab("voteok")
    a.e(f"s_mov_b32 {s(sT)}, {hexf(2.0**-60)}")
    a.e(f"v_mov_b32 {v(vT2)}, {s(sT)}")
    a.e(f"v_cmp_nge_f32 vcc, {v(vT1)}, {v(vT2)}")
    a.nop(2)
    a.e(f"s_cmp_lg_u64 vcc, 0")
    a.e(f"s_cselect_b32 {s(sT)}, 1, 0")
    a.e(f"v_mov_b32 {v(vT2)}, {s(sT)}")
    a.e(f"s_lshl_b32 {s(sT2)}, {s(sV)}, 2")
    a.e(f"s_add_u32 {s(sT2)}, {s(sT2)}, {LDS_FLAGS}")
    a.e(f"v_mov_b32 {v(vT3)}, {s(sT2)}")
    a.e(f"ds_write_b32 {v(vT3)}, {v(vT2)}")
    a.e("s_waitcnt lgkmcnt(0)")
    a.e("s_barrier")
    a.e(f"v_and_b32 {v(vT3)}, 7, v0")
    a.e(f"v_lshlrev_b32 {v(vT3)}, 2, {v(vT3)}")
    a.e(f"v_add_u32 {v(vT3)}, {LDS_FLAGS}, {v(vT3)}")
    a.e(f"ds_read_b32 {v(vT2)}, {v(vT3)}")
    a.e("s_waitcnt lgkmcnt(0)")
    a.e(f"v_cmp_ne_u32 vcc, 0, {v(vT2)}")
    a.nop(2)
    a.e(f"s_cmp_eq_u64 vcc, 0")
    a.e(f"s_cbranch_scc1 {Lok}")
    a.e(f"s_cmp_lg_u32 {s(sRetry)}, 0")
    a.e(f"s_cbranch_scc1 {Lok}")
    maxpass(a, Lstart)
    a.lab(Lok)

def maxpass(a, Lstart):
    a.c("---- fallback: true max pass ----")
    a.e(f"s_mov_b32 {s(sRetry)}, 1")
    a.e("s_barrier")
    a.e("s_mov_b32 exec_lo, 0")
    a.e(f"v_mov_b32 {v(vQ2)}, 0")
    a.e("s_mov_b32 exec_lo, -1")
    a.e(f"v_mov_b32 {v(vT2)}, 0xff800000")
    a.e(f"s_mov_b32 {s(sChunk)}, 0")
    Lc = a.newlab("mp_chunk"); Lb = a.newlab("mp_blk")
    a.lab(Lc)
    a.e(f"s_mul_i32 {s(sT)}, {s(sChunk)}, {CHUNK}")
    a.e(f"s_mov_b32 {s(sT3)}, 0")
    kv_dma(a, sT, sT3)
    a.e("s_waitcnt vmcnt(0)")
    a.e("s_barrier")
    a.e(f"v_mov_b32 {v(aK1c)}, {v(vLK1)}")
    a.e(f"v_mov_b32 {v(aK2c)}, {v(vLK2)}")
    a.e(f"s_mov_b32 {s(sT2)}, 0")
    a.lab(Lb)
    a.e(f"ds_read_b128 {v(KV[0]['K1'],4)}, {v(aK1c)}")
    a.e(f"ds_read_b64 {v(KV[0]['K2'],2)}, {v(aK2c)}")
    a.e("s_waitcnt lgkmcnt(0)")
    a.e(f"v_mfma_f32_32x32x16_bf16 {v(vS0,16)}, {v(KV[0]['K1'],4)}, {v(vQ1,4)}, 0")
    a.e(f"v_mfma_f32_32x32x8_bf16 {v(vS0,16)}, {v(KV[0]['K2'],2)}, {v(vQ2,2)}, {v(vS0,16)}")
    a.nop(16)
    for r in range(0, 16, 2):
        a.e(f"v_max3_f32 {v(vT2)}, {v(vS0+r)}, {v(vS0+r+1)}, {v(vT2)}")
    a.e(f"v_add_u32 {v(aK1c)}, 3072, {v(aK1c)}")
    a.e(f"v_add_u32 {v(aK2c)}, 3072, {v(aK2c)}")
    a.e(f"s_add_u32 {s(sT2)}, {s(sT2)}, 1")
    a.e(f"s_cmp_lt_u32 {s(sT2)}, 8")
    a.e(f"s_cbranch_scc1 {Lb}")
    a.e("s_barrier")
    a.e(f"s_add_u32 {s(sChunk)}, {s(sChunk)}, 1")
    a.e(f"s_cmp_lt_u32 {s(sChunk)}, 8")
    a.e(f"s_cbranch_scc1 {Lc}")
    a.e(f"v_mov_b32 {v(vT3)}, {v(vT2)}")
    a.nop(2)
    a.e(f"v_permlane32_swap_b32 {v(vT2)}, {v(vT3)}")
    a.nop(1)
    a.e(f"v_max_f32 {v(vT2)}, {v(vT2)}, {v(vT3)}")
    a.e(f"v_cvt_pk_bf16_f32 {v(vT3)}, {v(vT2)}, 0")
    a.e(f"v_lshlrev_b32 {v(vT3)}, 16, {v(vT3)}")
    a.e(f"v_sub_f32 {v(vT2)}, {v(vT2)}, {v(vT3)}")
    a.e(f"v_cvt_pk_bf16_f32 {v(vT3)}, -{v(vT3)}, -{v(vT2)}")
    a.e("s_mov_b32 exec_lo, 0")
    a.e(f"v_mov_b32 {v(vQ2)}, {v(vT3)}")
    a.e("s_mov_b32 exec_lo, -1")
    a.e(f"s_branch {Lstart}")

def epilogue(a):
    a.c("==== A: normalise, publish o ====")
    a.e(f"v_rcp_f32 {v(vT1)}, {v(vT1)}")
    a.nop(1)
    for r in range(12):
        a.e(f"v_mul_f32 {v(vO+r)}, {v(vO+r)}, {v(vT1)}")
    for i in range(6):
        a.e(f"v_cvt_pk_bf16_f32 {v(vS0+i)}, {v(vO+2*i)}, {v(vO+2*i+1)}")
    a.e(f"v_and_b32 {v(vT0)}, 31, v0")
    a.e(f"s_lshl_b32 {s(sT)}, {s(sNT)}, 5")
    a.e(f"v_add_u32 {v(vT0)}, {s(sT)}, {v(vT0)}")
    a.e(f"v_mul_u32_u24 {v(vT0)}, {OROW}, {v(vT0)}")
    a.e(f"v_lshrrev_b32 {v(vT2)}, 5, v0")
    a.e(f"v_lshl_add_u32 {v(vT0)}, {v(vT2)}, 3, {v(vT0)}")
    a.e(f"s_mul_i32 {s(sT)}, {s(sGH)}, 40")
    a.e(f"v_add_u32 {v(vT0)}, {s(sT)}, {v(vT0)}")
    a.e(f"ds_write_b64 {v(vT0)}, {v(vS0,2)}")
    a.e(f"ds_write_b64 {v(vT0)}, {v(vS0+2,2)} offset:16")
    a.e("s_mov_b32 exec_hi, 0")
    a.e(f"ds_write_b64 {v(vT0)}, {v(vS0+4,2)} offset:32")
    a.e("s_mov_b32 exec_hi, -1")
    a.e("s_waitcnt lgkmcnt(0)")
    a.e("s_barrier")
    def piece(first):
        a.e(f"v_lshrrev_b32 {v(vT1)}, 6, {v(vT0)}")
        a.e(f"v_and_b32 {v(vT2)}, 63, {v(vT0)}")
        a.e(f"v_mul_u32_u24 {v(vT3)}, {OROW}, {v(vT2)}")
        a.e(f"v_lshl_add_u32 {v(vT3)}, {v(vT1)}, 4, {v(vT3)}")
        a.e(f"ds_read_b128 {v(vS1,4)}, {v(vT3)}")
        a.e(f"s_mul_i32 {s(sT)}, {s(sJ)}, 10")
        a.e(f"v_add_u32 {v(vT1)}, {s(sT)}, {v(vT1)}")
        a.e(f"v_lshlrev_b32 {v(vT1)}, 8, {v(vT1)}")
        a.e(f"v_lshrrev_b32 {v(vT3)}, 4, {v(vT2)}")
        a.e(f"v_mul_u32_u24 {v(vT3)}, 20480, {v(vT3)}")
        a.e(f"v_add_u32 {v(vT1)}, {v(vT1)}, {v(vT3)}")
        a.e(f"v_and_b32 {v(vT2)}, 15, {v(vT2)}")
        a.e(f"v_lshl_add_u32 {v(vT1)}, {v(vT2)}, 4, {v(vT1)}")
        a.e(f"s_mul_i32 {s(sT)}, {s(sQB)}, 81920")
        a.e(f"s_add_u32 {s(sT)}, {s(sT)}, {WS_O}")
        a.e("s_waitcnt lgkmcnt(0)")
        a.e(f"buffer_store_dwordx4 {v(vS1,4)}, {v(vT1)}, {s(SWS,4)}, {s(sT)} offen sc1")
    a.e(f"s_lshl_b32 {s(sT2)}, {s(sV)}, 6")
    a.e(f"v_add_u32 {v(vT0)}, {s(sT2)}, v0")
    piece(True)
    Ls = a.newlab("nop2")
    a.e(f"s_cmp_ge_u32 {s(sV)}, 2")
    a.e(f"s_cbranch_scc1 {Ls}")
    a.e(f"v_add_u32 {v(vT0)}, 512, {v(vT0)}")
    a.nop(2)
    piece(False)
    a.lab(Ls)
    a.e("s_waitcnt vmcnt(0)")
    a.e("s_barrier")
    stamp(a, 7)
    Le = a.newlab("noarr")
    a.e(f"s_cmp_lg_u32 {s(sV)}, 0")
    a.e(f"s_cbranch_scc1 {Le}")
    a.e(f"s_lshl_b32 {s(sT)}, {s(sQB)}, 9")
    a.e(f"s_lshl_b32 {s(sT2)}, {s(sJ)}, 2")
    a.e(f"s_add_u32 {s(sT)}, {s(sT)}, {s(sT2)}")
    a.e(f"s_add_u32 {s(sT)}, {s(sT)}, {MB_B2}")
    flag_store(a, SWS, sT, sNonce, vT0, vT1)
    a.lab(Le)

def emit_A(a):
    if OPT.get("aprio", "0") != "0": a.e(f"s_setprio {OPT['aprio']}")
    stamp(a, 0)
    ids(a)
    qproj(a)
    stamp(a, 2)
    wait_b1(a)
    stamp(a, 3)
    Ls = attention(a)
    stamp(a, 5)
    stamp(a, 10, True)
    safety_vote(a, Ls)
    stamp(a, 6)
    epilogue(a)
    stamp(a, 8)
    stamp_flush(a, 17, SWS, sV, vT0, vT1)
    a.e("s_endpgm")
```

```python
from common import *
import common, math
sW, sC, sM, sV, sT = 3, 4, 5, 6, 7
SU, SX, SWS, SDBG, SWK, SWV = 8, 12, 16, 20, 24, 28
sPAre, sPAim, sPBre, sPBim, sPCre, sPCim, sPldt, sPD = 32, 34, 36, 38, 40, 42, 44, 46
SWO, SOUT = 48, 52
sT2, sT3, sT4 = 56, 57, 58
sPM = 80
sPC = 82
sCH = 83
sE = 84
sQB, sJ = 85, 86
sUnit, sCS = 87, 88
sP5 = 89
sEx = 90
sNonce = 92
vNZ, vNC = 125, 126
L_UT0 = 71680
L_CNT = 71664
KG_STRIDE = 17408; KG_Y = 8704; KG_ROW = 272
L_A0 = 53248; A0_STRIDE = 4352
CP_STRIDE = 4416; CH_STRIDE = 4 * CP_STRIDE
L_UTL = 53248; UTL_STRIDE = 7600; UTL_Z = 2480

def ids(a):
    a.e(f"s_mov_b32 {s(sW)}, s2")
    for r, n in ((SU, "u"), (SX, "x"), (SWS, "ws"), (SDBG, "dbg"), (SWK, "wk"), (SWV, "wv"), (SWO, "wo"), (SOUT, "out")):
        srd(a, r, n, 0)
    for r, n in ((sPAre, "Are"), (sPAim, "Aim"), (sPBre, "Bre"), (sPBim, "Bim"), (sPCre, "Cre"), (sPCim, "Cim"), (sPldt, "ldt"), (sPD, "Dskip")):
        a.e(f"s_load_dwordx2 {s(r,2)}, s[0:1], {KA[n]}")
    a.e(f"v_lshrrev_b32 v1, 6, v0")
    a.e(f"s_and_b32 {s(sC)}, {s(sW)}, 7")
    a.e(f"s_lshr_b32 {s(sM)}, {s(sW)}, 3")
    a.e(f"v_readfirstlane_b32 {s(sV)}, v1")
    a.e(f"v_and_b32 v0, 63, v0")
    a.e(f"s_and_b32 {s(sE)}, {s(sM)}, 1")
    a.e(f"s_lshr_b32 {s(sT)}, {s(sM)}, 3")
    a.e(f"s_lshl_b32 {s(sT)}, {s(sT)}, 3")
    a.e(f"s_add_u32 {s(sQB)}, {s(sT)}, {s(sC)}")
    a.e(f"s_and_b32 {s(sJ)}, {s(sM)}, 7")
    a.e(f"s_lshr_b32 {s(sT)}, {s(sM)}, 1")
    a.e(f"s_mul_i32 {s(sT)}, {s(sT)}, 5")
    a.e(f"s_mul_i32 {s(sP5)}, {s(sC)}, 80")
    a.e(f"s_add_u32 {s(sP5)}, {s(sP5)}, {s(sT)}")
    for r, sz in ((SU, XSIZE), (SX, XSIZE), (SWS, WS_SIZE), (SDBG, 256), (SWK, WKVSIZE), (SWV, WKVSIZE), (SWO, WSIZE), (SOUT, OUTSIZE)):
        srd_fin(a, r, sz)

def tile_dma_160(a, srdr, sbase, lds_base, vt0, vt1, nrows_total=64, sc1=False):
    def one(first):
        a.e(f"v_mul_u32_u24 {v(vt1)}, 6554, {v(vt0)}")
        a.e(f"v_lshrrev_b32 {v(vt1)}, 16, {v(vt1)}")
        a.e(f"v_mul_u32_u24 {v(vt1)}, 1120, {v(vt1)}")
        a.e(f"v_lshl_add_u32 {v(vt1)}, {v(vt0)}, 4, {v(vt1)}")
        a.e(f"buffer_load_dwordx4 {v(vt1)}, {s(srdr,4)}, {s(sbase)} offen {'sc1 ' if sc1 else ''}lds")
    a.e(f"s_lshl_b32 {s(sT)}, {s(sV)}, 6")
    a.e(f"v_add_u32 {v(vt0)}, {s(sT)}, v0")
    a.e(f"s_lshl_b32 {s(sT)}, {s(sV)}, 10")
    a.e(f"s_add_u32 m0, {s(sT)}, {lds_base}")
    one(True)
    L = a.newlab("td2")
    a.e(f"s_cmp_ge_u32 {s(sV)}, 2")
    a.e(f"s_cbranch_scc1 {L}")
    a.e(f"v_add_u32 {v(vt0)}, 512, {v(vt0)}")
    a.e(f"s_add_u32 m0, {s(sT)}, {lds_base + 8192}")
    one(False)
    a.lab(L)

def u_tile_load(a):
    a.c("==== B: start u tile DMA ====")
    a.e(f"s_mul_i32 {s(sT2)}, {s(sM)}, {64*1280}")
    a.e(f"s_mul_i32 {s(sT3)}, {s(sC)}, 160")
    a.e(f"s_add_u32 {s(sT2)}, {s(sT2)}, {s(sT3)}")
    for e in range(640): assert (e * 6554) >> 16 == e // 10
    tile_dma_160(a, SU, sT2, L_UT0, 2, 3)

def lds_arrive(a, ncount, vt0, vt1, flag_sreg, name):
    L = a.newlab("arr_" + name)
    a.e(f"v_mov_b32 {v(vt0)}, {L_CNT}")
    a.e(f"v_mov_b32 {v(vt1)}, 1")
    a.e("s_mov_b64 exec, 1")
    a.e(f"ds_add_rtn_u32 {v(vt1)}, {v(vt0)}, {v(vt1)}")
    a.e("s_waitcnt lgkmcnt(0)")
    a.e(f"v_readfirstlane_b32 {s(sT)}, {v(vt1)}")
    a.e("s_mov_b64 exec, -1")
    a.nop(2)
    a.e(f"s_cmp_lg_u32 {s(sT)}, {ncount-1}")
    a.e(f"s_cbranch_scc1 {L}")
    flag_store(a, SWS, flag_sreg, sNonce, vt0, vt1)
    a.lab(L)

def global_arrive(a, vt0, vt1, flag_sreg, lanes=1, stride=0):
    L = a.newlab("garr")
    a.e(f"s_cmp_lg_u32 {s(sV)}, 0")
    a.e(f"s_cbranch_scc1 {L}")
    flag_store(a, SWS, flag_sreg, sNonce, vt0, vt1, lanes, stride)
    a.lab(L)

def flag_off(a, dst, kind):
    base = MB_B0 if kind == "B0" else MB_B3
    a.e(f"s_lshl_b32 {s(dst)}, {s(sC)}, 10")
    a.e(f"s_lshl_b32 {s(sT)}, {s(sM)}, 2")
    a.e(f"s_add_u32 {s(dst)}, {s(dst)}, {s(sT)}")
    a.e(f"s_add_u32 {s(dst)}, {s(dst)}, {base}")

def wait_counter(a, kind, target, vt0, vt1):
    L = a.newlab("nopoll")
    a.e(f"s_cmp_lg_u32 {s(sV)}, 0")
    a.e(f"s_cbranch_scc1 {L}")
    if kind in ("B0", "B3"):
        a.e(f"s_lshl_b32 {s(sT2)}, {s(sC)}, 10")
        a.e(f"s_add_u32 {s(sT2)}, {s(sT2)}, {MB_B0 if kind == 'B0' else MB_B3}")
        n = 32
    else:
        a.e(f"s_lshl_b32 {s(sT2)}, {s(sQB)}, 9")
        a.e(f"s_add_u32 {s(sT2)}, {s(sT2)}, {MB_B2}")
        n = 8
    a.e(f"v_and_b32 {v(vt0)}, {n-1}, v0")
    a.e(f"v_lshlrev_b32 {v(vt0)}, 2, {v(vt0)}")
    a.e(f"v_add_u32 {v(vt0)}, {s(sT2)}, {v(vt0)}")
    poll_flags(a, SWS, vt0, vt1, sNonce, (1 << n) - 1, sPC, sPM, kind, sleep=4, slow=(16 if kind == "B2" else 0))
    a.lab(L)
    a.e("s_barrier")

def nonce_make(a):
    L = a.newlab("nomake")
    a.e(f"s_or_b32 {s(sT)}, {s(sW)}, {s(sV)}")
    a.e(f"s_cmp_lg_u32 {s(sT)}, 0")
    a.e(f"s_cbranch_scc1 {L}")
    a.e(f"v_mov_b32 v2, {MB_NONCE}")
    a.e(f"buffer_load_dword v3, v2, {s(SWS,4)}, 0 offen sc1")
    a.e(f"s_mov_b32 {s(sT)}, 0x9e3779b1")
    a.e("s_waitcnt vmcnt(0)")
    a.e(f"v_mul_lo_u32 v3, v3, {s(sT)}")
    a.e(f"v_add_u32 v3, 0x7f4a7c15, v3")
    a.e(f"v_or_b32 v3, 1, v3")
    a.e(f"v_mov_b32 v4, 0")
    a.e("s_mov_b64 exec, 1")
    a.e(f"buffer_store_dword v3, v4, {s(SDBG,4)}, 0 offen sc1")
    a.e(f"buffer_store_dword v3, v2, {s(SWS,4)}, 0 offen sc1")
    a.e("s_mov_b64 exec, -1")
    a.lab(L)

def kvproj(a):
    a.c("==== B: K/V projection (workgroups 0..63) ====")
    Lskip = a.newlab("nokv")
    a.e(f"s_cmp_ge_u32 {s(sW)}, 64")
    a.e(f"s_cbranch_scc1 {Lskip}")
    XF = 8
    accK, accV = 32, 48
    WF = 64
    a.e(f"v_and_b32 v2, 31, v0")
    a.e(f"v_mul_u32_u24 v2, 1280, v2")
    a.e(f"v_lshrrev_b32 v3, 5, v0")
    a.e(f"v_lshl_add_u32 v2, v3, 4, v2")
    a.e(f"s_mul_i32 {s(sT2)}, {s(sW)}, {32*1280}")
    a.e(f"s_mul_i32 {s(sT3)}, {s(sV)}, 160")
    a.e(f"s_add_u32 {s(sT2)}, {s(sT2)}, {s(sT3)}")
    for ks in range(5):
        a.e(f"buffer_load_dwordx4 {v(XF+4*ks,4)}, v2, {s(SX,4)}, {s(sT2)} offen offset:{32*ks}")
    a.e(f"v_lshlrev_b32 v3, 4, v0")
    a.e(f"s_mul_i32 {s(sT3)}, {s(sV)}, 3200")
    a.e(f"s_lshl_b32 {s(sT4)}, {s(sV)}, 13")
    for srdr, off in ((SWK, 0), (SWV, 3200)):
        a.e(f"s_add_u32 m0, {s(sT4)}, {off}")
        a.e("s_nop 0")
        for i in range(3):
            a.e(f"buffer_load_dwordx4 v3, {s(srdr,4)}, {s(sT3)} offen offset:{1024*i} lds")
        a.e("s_mov_b64 exec, 0xff")
        a.e(f"buffer_load_dwordx4 v3, {s(srdr,4)}, {s(sT3)} offen offset:3072 lds")
        a.e("s_mov_b64 exec, -1")
    a.e(f"v_lshrrev_b32 v4, 5, v0")
    a.e(f"v_lshlrev_b32 v4, 3, v4")
    a.e(f"v_bfe_u32 v5, v0, 2, 2")
    a.e(f"v_add_u32 v4, v4, v5")
    a.e(f"v_mul_u32_u24 v4, 40, v4")
    a.e(f"v_bfe_u32 v5, v0, 4, 1")
    a.e(f"v_lshl_add_u32 v4, v5, 5, v4")
    a.e(f"v_and_b32 v5, 3, v0")
    a.e(f"v_lshl_add_u32 v4, v5, 3, v4")
    a.e(f"v_add_u32 v4, {s(sT4)}, v4")
    a.e("s_waitcnt vmcnt(0)")
    stamp(a, 12)
    for ks in range(5):
        for w, off in ((0, 0), (1, 3200)):
            r = WF + 8 * ks + 4 * w
            a.e(f"ds_read_b64_tr_b16 {v(r,2)}, v4 offset:{off + 640*ks}")
            a.e(f"ds_read_b64_tr_b16 {v(r+2,2)}, v4 offset:{off + 640*ks + 160}")
    for ks in range(5):
        a.e(f"s_waitcnt lgkmcnt({min(15, 4*(4-ks))})")
        r = WF + 8 * ks
        cK = "0" if ks == 0 else v(accK, 16); cV = "0" if ks == 0 else v(accV, 16)
        a.e(f"v_mfma_f32_32x32x16_bf16 {v(accK,16)}, {v(r,4)}, {v(XF+4*ks,4)}, {cK}")
        a.e(f"v_mfma_f32_32x32x16_bf16 {v(accV,16)}, {v(XF+4*ks,4)}, {v(r+4,4)}, {cV}")
    a.e(f"v_lshlrev_b32 v5, 4, v0")
    a.e(f"v_add_u32 v5, {s(sT4)}, v5")
    a.nop(14)
    for q in range(4):
        a.e(f"ds_write_b128 v5, {v(accK+4*q,4)} offset:{1024*q}")
    for q in range(4):
        a.e(f"ds_write_b128 v5, {v(accV+4*q,4)} offset:{4096+1024*q}")
    a.e("s_waitcnt lgkmcnt(0)")
    a.e("s_barrier")
    stamp(a, 13)
    nonce_issue(a, SDBG, vNZ, vNC)
    Lred_done = a.newlab("kvred_done"); LV = a.newlab("kvV")
    a.e(f"s_cmp_gt_u32 {s(sV)}, 2")
    a.e(f"s_cbranch_scc1 {Lred_done}")
    a.e(f"v_lshlrev_b32 v5, 4, v0")
    a.e(f"s_cmp_lg_u32 {s(sV)}, 0")
    a.e(f"s_cbranch_scc1 {LV}")
    def reduce(nq, qoff, sum0):
        B = 8
        for half in range(2):
            for p in range(4):
                for q in range(nq):
                    a.e(f"ds_read_b128 {v(B + (p*nq+q)*4, 4)}, v5 offset:{(4*half+p)*8192 + qoff + 1024*q}")
            a.e("s_waitcnt lgkmcnt(0)")
            for r in range(4 * nq):
                x = [B + p*nq*4 + r for p in range(4)]
                a.e(f"v_add_f32 {v(x[0])}, {v(x[0])}, {v(x[1])}")
                a.e(f"v_add_f32 {v(x[2])}, {v(x[2])}, {v(x[3])}")
                if half == 0:
                    a.e(f"v_add_f32 {v(sum0+r)}, {v(x[0])}, {v(x[2])}")
                else:
                    a.e(f"v_add_f32 {v(x[0])}, {v(x[0])}, {v(x[2])}")
                    a.e(f"v_add_f32 {v(sum0+r)}, {v(sum0+r)}, {v(x[0])}")
    SUM = 64
    reduce(3, 0, SUM)
    a.e("s_mov_b32 exec_lo, 0")
    for r in range(8, 12): a.e(f"v_mov_b32 {v(SUM+r)}, 0")
    a.e("s_mov_b32 exec_lo, -1")
    a.e(f"v_mul_f32 v6, {v(SUM)}, {v(SUM)}")
    for r in range(1, 12): a.e(f"v_fmac_f32 v6, {v(SUM+r)}, {v(SUM+r)}")
    for i in range(6): a.e(f"v_cvt_pk_bf16_f32 {v(80+i)}, {v(SUM+2*i)}, {v(SUM+2*i+1)}")
    a.e("s_mov_b32 exec_lo, 0")
    a.e(f"v_mov_b32 v84, 0x3f803f80")
    a.e("s_mov_b32 exec_lo, -1")
    a.e(f"s_mul_i32 {s(sT2)}, {s(sW)}, 3072")
    if WS_KV: a.e(f"s_add_u32 {s(sT2)}, {s(sT2)}, {WS_KV}")
    a.e(f"buffer_store_dwordx4 v[80:83], v5, {s(SWS,4)}, {s(sT2)} offen sc1")
    a.e(f"v_lshlrev_b32 v7, 3, v0")
    a.e(f"buffer_store_dwordx2 v[84:85], v7, {s(SWS,4)}, {s(sT2)} offen offset:1024 sc1")
    a.e(f"v_mov_b32 v7, v6")
    a.nop(2)
    a.e(f"v_permlane32_swap_b32 v6, v7")
    a.nop(1)
    a.e(f"v_add_f32 v6, v6, v7")
    for d in ("row_shr:1", "row_shr:2", "row_shr:4", "row_shr:8", "row_bcast:15 row_mask:0xa", "row_bcast:31 row_mask:0xc"):
        a.nop(2)
        a.e(f"v_max_f32_dpp v6, v6, v6 {d}" + ("" if "row_mask" in d else " row_mask:0xf") + " bank_mask:0xf")
    a.nop(2)
    a.e(f"v_readlane_b32 {s(sT3)}, v6, 63")
    a.nop(2)
    a.e(f"v_mov_b32 v8, {s(sT3)}")
    a.e(f"v_mov_b32 v9, 0")
    a.e(f"v_mov_b32 v10, 0")
    a.e(f"v_mov_b32 v11, 0")
    a.e(f"v_mov_b32 v7, {WS_KV + KMAX_OFF}")
    a.e("s_mov_b64 exec, 1")
    a.e(f"buffer_store_dwordx4 v[8:11], v7, {s(SWS,4)}, {s(sT2)} offen sc1")
    a.e("s_mov_b64 exec, -1")
    a.e(f"s_branch {Lred_done}")
    a.lab(LV)
    a.e(f"s_sub_u32 {s(sT)}, {s(sV)}, 1")
    a.e(f"s_lshl_b32 {s(sT)}, {s(sT)}, 11")
    a.e(f"v_add_u32 v5, {s(sT)}, v5")
    reduce(2, 4096, SUM)
    for i in range(4): a.e(f"v_cvt_pk_bf16_f32 {v(80+i)}, {v(SUM+2*i)}, {v(SUM+2*i+1)}")
    a.e(f"v_and_b32 v6, 31, v0")
    a.e(f"v_cmp_lt_u32 vcc, 19, v6")
    a.e(f"s_and_saveexec_b64 {s(sEx,2)}, vcc")
    for i in range(4): a.e(f"v_mov_b32 {v(80+i)}, 0")
    a.e(f"s_mov_b64 exec, {s(sEx,2)}")
    a.e(f"v_cmp_eq_u32 vcc, 20, v6")
    a.e(f"s_and_saveexec_b64 {s(sEx,2)}, vcc")
    for i in range(4): a.e(f"v_mov_b32 {v(80+i)}, 0x3f803f80")
    a.e(f"s_mov_b64 exec, {s(sEx,2)}")
    a.e(f"v_lshrrev_b32 v7, 5, v0")
    a.e(f"v_mul_u32_u24 v7, 24, v7")
    a.e(f"v_add_u32 v7, v7, v6")
    a.e(f"v_lshlrev_b32 v7, 4, v7")
    a.e(f"s_mul_i32 {s(sT2)}, {s(sW)}, 3072")
    a.e(f"s_sub_u32 {s(sT)}, {s(sV)}, 1")
    a.e(f"s_mul_i32 {s(sT)}, {s(sT)}, 768")
    a.e(f"s_add_u32 {s(sT2)}, {s(sT2)}, {s(sT)}")
    a.e(f"s_add_u32 {s(sT2)}, {s(sT2)}, {WS_KV + 1536}")
    a.e(f"s_mov_b32 {s(sT)}, 0x00ffffff")
    a.e(f"s_cmp_eq_u32 {s(sV)}, 1")
    a.e(f"s_cselect_b32 {s(sT)}, 0x00bfffff, {s(sT)}")
    a.e(f"s_mov_b32 exec_lo, {s(sT)}")
    a.e(f"s_mov_b32 exec_hi, 0x00ffffff")
    a.e(f"buffer_store_dwordx4 v[80:83], v7, {s(SWS,4)}, {s(sT2)} offen sc1")
    a.e("s_mov_b64 exec, -1")
    a.lab(Lred_done)
    stamp(a, 14)
    a.e("s_waitcnt vmcnt(0)")
    nonce_get(a, SDBG, vNZ, vNC, sNonce, sPC)
    a.e("s_barrier")
    stamp(a, 15)
    a.e(f"s_lshl_b32 {s(sT2)}, {s(sW)}, 2")
    a.e(f"s_add_u32 {s(sT2)}, {s(sT2)}, {MB_B1}")
    global_arrive(a, 6, 7, sT2, lanes=8, stride=1024)
    a.lab(Lskip)

def u_transpose(a):
    a.c("==== B: u tile -> u^T ====")
    a.e(f"s_sub_u32 {s(sT2)}, {s(sV)}, 3")
    a.e(f"v_lshrrev_b32 v2, 4, v0")
    a.e(f"v_lshlrev_b32 v2, 3, v2")
    a.e(f"v_bfe_u32 v3, v0, 2, 2")
    a.e(f"v_add_u32 v2, v2, v3")
    a.e(f"v_mul_u32_u24 v2, 160, v2")
    a.e(f"v_and_b32 v3, 3, v0")
    a.e(f"v_lshl_add_u32 v2, v3, 3, v2")
    a.e(f"s_lshl_b32 {s(sT)}, {s(sT2)}, 5")
    a.e(f"s_add_u32 {s(sT)}, {s(sT)}, {L_UT0}")
    a.e(f"v_add_u32 v2, {s(sT)}, v2")
    for th in range(2):
        a.e(f"ds_read_b64_tr_b16 {v(8+4*th,2)}, v2 offset:{th*5120}")
        a.e(f"ds_read_b64_tr_b16 {v(10+4*th,2)}, v2 offset:{th*5120+640}")
    a.e(f"v_and_b32 v3, 15, v0")
    a.e(f"v_lshlrev_b32 v3, 12, v3")
    a.e(f"v_lshrrev_b32 v4, 4, v0")
    a.e(f"v_lshl_add_u32 v3, v4, 4, v3")
    a.e(f"s_mul_i32 {s(sT)}, {s(sC)}, 80")
    a.e(f"s_lshl_b32 {s(sT2)}, {s(sT2)}, 4")
    a.e(f"s_add_u32 {s(sT)}, {s(sT)}, {s(sT2)}")
    a.e(f"s_lshl_b32 {s(sT)}, {s(sT)}, 12")
    a.e(f"s_lshl_b32 {s(sT2)}, {s(sM)}, 7")
    a.e(f"s_add_u32 {s(sT)}, {s(sT)}, {s(sT2)}")
    a.e(f"s_add_u32 {s(sT)}, {s(sT)}, {WS_UT}")
    a.e("s_waitcnt lgkmcnt(2)")
    a.e(f"buffer_store_dwordx4 v[8:11], v3, {s(SWS,4)}, {s(sT)} offen sc1")
    a.e("s_waitcnt lgkmcnt(0)")
    a.e(f"buffer_store_dwordx4 v[12:15], v3, {s(SWS,4)}, {s(sT)} offen offset:64 sc1")
    a.e("s_waitcnt vmcnt(0)")
    flag_off(a, sT2, "B0")
    lds_arrive(a, 5, 2, 3, sT2, "b0")

XROWS = {}
def rowidx(h, r): return (r & 3) + 8 * (r >> 2) + 4 * h
for r, c_ in enumerate(list(range(8)) + [256, 258, 260, 262, 264]): XROWS[c_] = rowidx(0, r)
for r, c_ in enumerate([512, 516, 520, 768, 772, 776, 1024, 1032, 1280, 1288, 1536, 1544, 1792, 1800]): XROWS[c_] = rowidx(1, r)

def cmul(a, d, x, w, t):
    a.e(f"v_pk_mul_f32 {v(t,2)}, {v(x,2)}, {v(w,2)} op_sel:[1,1] op_sel_hi:[1,0]")
    a.e(f"v_pk_fma_f32 {v(d,2)}, {v(x,2)}, {v(w,2)}, {v(t,2)} op_sel:[0,0,0] op_sel_hi:[0,1,1] neg_lo:[0,0,1]")

def kgen_loads(a):
    a.c("==== B: K generation parameter loads (waves 0..2) ====")
    Lskip = a.newlab("kgl_skip")
    a.e(f"s_cmp_ge_u32 {s(sV)}, 3")
    a.e(f"s_cbranch_scc1 {Lskip}")
    chan_of_slot(a, sCH, sV)
    a.e(f"s_lshl_b32 {s(sT)}, {s(sCH)}, 8")
    a.e(f"v_lshlrev_b32 v2, 1, v0")
    a.e(f"v_add_u32 v2, {s(sT)}, v2")
    for hf in range(2):
        for i, p in enumerate((sPAre, sPAim, sPBre, sPBim, sPCre, sPCim)):
            a.e(f"global_load_ushort {v(PR+6*hf+i)}, v2, {s(p,2)} offset:{128*hf}")
    a.e(f"s_lshl_b32 {s(sT)}, {s(sCH)}, 1")
    a.e(f"v_mov_b32 v3, {s(sT)}")
    a.e(f"global_load_ushort {v(vDT)}, v3, {s(sPldt,2)}")
    a.lab(Lskip)

PR = 112
vDT = 124
def kgen(a):
    a.c("==== B: K generation (waves 0..2) ====")
    a.e(f"s_mul_i32 {s(sT2)}, {s(sV)}, {KG_STRIDE}")
    a.e(f"v_lshlrev_b32 v4, 2, v0")
    a.e(f"v_add_u32 v4, {s(sT2)}, v4")
    a.e(f"v_and_b32 v5, 31, v0")
    a.e(f"v_mul_u32_u24 v5, {KG_ROW}, v5")
    a.e(f"v_lshrrev_b32 v6, 5, v0")
    a.e(f"v_lshl_add_u32 v5, v6, 4, v5")
    a.e(f"v_add_u32 v5, {s(sT2)}, v5")
    acc = 96
    L2E = math.log2(math.e)
    a.e(f"v_lshlrev_b32 v20, 16, {v(vDT)}")
    a.e(f"s_mov_b32 {s(sT)}, {hexf(L2E)}")
    a.e(f"v_mul_f32 v20, {s(sT)}, v20")
    a.e(f"v_exp_f32 v20, v20")
    a.nop(1)
    a.e(f"v_cvt_pk_bf16_f32 v20, v20, v20")
    a.e(f"v_lshlrev_b32 v20, 16, v20")
    Z1, Z2, Z4, Z8, Z256, W_, X, T, Y, ZC8, T2 = 24, 26, 28, 30, 32, 34, 36, 38, 40, 42, 44
    AR, BI = 22, 23
    XS = 46
    for hf in range(2):
        p = PR + 6 * hf
        for i in range(6): a.e(f"v_lshlrev_b32 {v(p+i)}, 16, {v(p+i)}")
        a.e(f"v_mul_f32 {v(AR)}, v20, {v(p)}")
        a.e(f"v_mul_f32 {v(BI)}, v20, {v(p+1)}")
        a.e(f"s_mov_b32 {s(sT)}, {hexf(L2E)}")
        a.e(f"v_mul_f32 {v(AR)}, {s(sT)}, {v(AR)}")
        a.e(f"v_mul_f32 {v(BI)}, {hexf(1.0/(2*math.pi))}, {v(BI)}")
        a.e(f"v_mul_f32 {v(p+2)}, v20, {v(p+2)}")
        a.e(f"v_mul_f32 {v(p+3)}, v20, {v(p+3)}")
        a.e(f"v_mul_f32 {v(T)}, {v(p+5)}, {v(p+3)}")
        a.e(f"v_fma_f32 {v(W_)}, {v(p+4)}, {v(p+2)}, -{v(T)}")
        a.e(f"v_mul_f32 {v(T)}, {v(p+5)}, {v(p+2)}")
        a.e(f"v_fma_f32 {v(W_+1)}, {v(p+4)}, {v(p+3)}, {v(T)}")
        for zr, l in ((Z1, 1.0), (Z2, 2.0), (Z4, 4.0), (Z8, 8.0), (Z256, 256.0)):
            if l == 256.0:
                a.e(f"v_mul_f32 {v(T)}, {hexf(l)}, {v(AR)}")
                a.e(f"v_mul_f32 {v(T+1)}, {hexf(l)}, {v(BI)}")
            else:
                lit = {1.0: "1.0", 2.0: "2.0", 4.0: "4.0", 8.0: hexf(8.0)}[l]
                a.e(f"v_mul_f32 {v(T)}, {lit}, {v(AR)}")
                a.e(f"v_mul_f32 {v(T+1)}, {lit}, {v(BI)}")
            a.e(f"v_exp_f32 {v(T)}, {v(T)}")
            a.e(f"v_fract_f32 {v(T+1)}, {v(T+1)}")
            a.e(f"v_cos_f32 {v(zr)}, {v(T+1)}")
            a.e(f"v_sin_f32 {v(zr+1)}, {v(T+1)}")
            a.nop(1)
            a.e(f"v_mul_f32 {v(zr)}, {v(zr)}, {v(T)}")
            a.e(f"v_mul_f32 {v(zr+1)}, {v(zr+1)}, {v(T)}")
        a.e(f"v_mov_b32 {v(ZC8)}, {v(Z8)}")
        a.e(f"v_xor_b32 {v(ZC8+1)}, 0x80000000, {v(Z8+1)}")
        xops = []
        def putX(reg, c_):
            return [f"v_cvt_pk_bf16_f32 {v(T2)}, {v(reg)}, {v(reg+1)}", f"ds_write_b32 v4, {v(T2)} offset:{XROWS[c_]*KG_ROW}"]
        def putY(reg, b):
            return [f"v_cvt_pk_bf16_f32 {v(T2+1)}, {v(reg)}, {v(reg+1)}", f"ds_write_b32 v4, {v(T2+1)} offset:{KG_Y + b*KG_ROW}"]
        def cm(d, x, w, t):
            return [f"v_pk_mul_f32 {v(t,2)}, {v(x,2)}, {v(w,2)} op_sel:[1,1] op_sel_hi:[1,0]",
                    f"v_pk_fma_f32 {v(d,2)}, {v(x,2)}, {v(w,2)}, {v(t,2)} op_sel:[0,0,0] op_sel_hi:[0,1,1] neg_lo:[0,0,1]"]
        XA, XB = X, XS
        xs = []
        xs.append(putX(W_, 0))
        prev = W_
        for c_ in range(1, 8):
            xs.append(cm(XA, prev, Z1, T) + putX(XA, c_)); prev = XA
        xs.append(cm(XB, W_, Z256, T) + putX(XB, 256))
        prev = XB
        for c_ in (258, 260, 262, 264):
            xs.append(cm(XA, prev, Z2, T) + putX(XA, c_)); prev = XA
        for base in (512, 768):
            xs.append(cm(XB, XB, Z256, T) + putX(XB, base))
            xs.append(cm(XA, XB, Z4, T) + putX(XA, base + 4))
            xs.append(cm(XA, XA, Z4, T) + putX(XA, base + 8))
        for base in (1024, 1280, 1536, 1792):
            xs.append(cm(XB, XB, Z256, T) + putX(XB, base))
            xs.append(cm(XA, XB, Z8, T) + putX(XA, base + 8))
        ys = []
        ys.append([f"v_mov_b32 {v(Y)}, 1.0", f"v_mov_b32 {v(Y+1)}, 0"] + putY(Y, 0))
        TY = T2 + 2 - 0
        for b in range(1, 32):
            ys.append(cm(Y, Y, ZC8, 50) + putY(Y, b))
        n = max(len(xs), len(ys))
        for i in range(n):
            xa = xs[i] if i < len(xs) else []
            ya = ys[i] if i < len(ys) else []
            m_ = max(len(xa), len(ya))
            for k in range(m_):
                if k < len(xa): a.e(xa[k])
                if k < len(ya): a.e(ya[k])
        a.e("s_waitcnt lgkmcnt(0)")
        FA, FB = 52, 56
        for grp in range(2):
            for k in range(4):
                ks = 4 * grp + k
                a.e(f"ds_read_b128 {v(60+8*k,4)}, v5 offset:{32*ks}")
                a.e(f"ds_read_b128 {v(64+8*k,4)}, v5 offset:{KG_Y + 32*ks}")
            for k in range(4):
                a.e(f"s_waitcnt lgkmcnt({6-2*k})")
                cin = "0" if (hf == 0 and grp == 0 and k == 0) else v(acc, 16)
                a.e(f"v_mfma_f32_32x32x16_bf16 {v(acc,16)}, {v(60+8*k,4)}, {v(64+8*k,4)}, {cin}")
    a.nop(14)
    a.e(f"s_mul_i32 {s(sT2)}, {s(sV)}, {A0_STRIDE}")
    a.e(f"s_add_u32 {s(sT2)}, {s(sT2)}, {L_A0}")
    a.e(f"v_and_b32 v2, 31, v0")
    a.e(f"v_lshlrev_b32 v2, 4, v2")
    a.e(f"v_sub_u32 v2, {2040*2}, v2")
    a.e(f"v_add_u32 v2, {s(sT2)}, v2")
    a.e(f"v_lshlrev_b32 v3, 2, v0")
    a.e(f"v_add_u32 v3, {s(sT2)}, v3")
    a.e(f"v_mov_b32 v6, 0")
    a.e(f"ds_write_b32 v3, v6 offset:4096")
    D = 8
    def pk(d, lo, hi): a.e(f"v_cvt_pk_bf16_f32 {v(d)}, {v(acc+lo)}, {v(acc+hi)}")
    def wr(base):
        a.e(f"v_subrev_u32 v7, {2*base}, v2")
        a.e(f"ds_write_b128 v7, {v(D,4)}")
        a.nop(2)
    a.e("s_mov_b32 exec_hi, 0")
    pk(D, 7, 6); pk(D+1, 5, 4); pk(D+2, 3, 2); pk(D+3, 1, 0); wr(0)
    pk(D, 12, 11); pk(D+1, 10, 10); pk(D+2, 10, 9); pk(D+3, 8, 8); wr(256)
    a.e("s_mov_b32 exec_hi, -1")
    a.e("s_mov_b32 exec_lo, 0")
    for base, r0 in ((512, 0), (768, 3)):
        pk(D, r0+2, r0+2); pk(D+1, r0+1, r0+1); pk(D+2, r0+1, r0); pk(D+3, r0, r0); wr(base)
    a.e(f"s_mov_b32 {s(sPM)}, 0xaaaaaaaa")
    a.e(f"s_mov_b32 {s(sPM+1)}, 0xaaaaaaaa")
    for i, base in enumerate((1024, 1280, 1536, 1792)):
        g0, g8 = 6 + 2*i, 7 + 2*i
        a.e(f"v_cndmask_b32 v6, {v(acc+g0)}, {v(acc+g8)}, {s(sPM,2)}")
        pk(D, g8, g8)
        a.e(f"v_cvt_pk_bf16_f32 {v(D+1)}, {v(acc+g8)}, v6")
        pk(D+2, g0, g0); pk(D+3, g0, g0); wr(base)
    a.e("s_mov_b32 exec_lo, -1")
    a.e("s_waitcnt lgkmcnt(0)")

def expand(a):
    a.c("==== B: build the 4 shifted copies ====")
    def task(sreg):
        L = a.newlab("exp_skip")
        a.e(f"s_mul_i32 {s(sT2)}, {s(sreg)}, 13108")
        a.e(f"s_lshr_b32 {s(sT2)}, {s(sT2)}, 16")
        a.e(f"s_mul_i32 {s(sT3)}, {s(sT2)}, 5")
        a.e(f"s_sub_u32 {s(sT3)}, {s(sreg)}, {s(sT3)}")
        a.e(f"s_lshl_b32 {s(sT3)}, {s(sT3)}, 6")
        a.e(f"v_add_u32 v2, {s(sT3)}, v0")
        a.e(f"v_cmp_gt_u32 vcc, 264, v2")
        a.e(f"s_and_saveexec_b64 {s(sEx,2)}, vcc")
        a.e(f"v_lshlrev_b32 v2, 4, v2")
        a.e(f"s_mul_i32 {s(sT3)}, {s(sT2)}, {A0_STRIDE}")
        a.e(f"s_add_u32 {s(sT3)}, {s(sT3)}, {L_A0}")
        a.e(f"v_add_u32 v3, {s(sT3)}, v2")
        a.e(f"ds_read_b128 v[8:11], v3")
        a.e(f"ds_read_b64 v[12:13], v3 offset:16")
        a.e(f"s_mul_i32 {s(sT3)}, {s(sT2)}, {CH_STRIDE}")
        a.e(f"v_add_u32 v3, {s(sT3)}, v2")
        a.e("s_waitcnt lgkmcnt(0)")
        for k in range(5):
            a.e(f"v_alignbit_b32 {v(16+k)}, {v(9+k)}, {v(8+k)}, 16")
        a.e(f"ds_write_b128 v3, v[8:11]")
        a.e(f"ds_write_b128 v3, v[16:19] offset:{CP_STRIDE}")
        for k in range(4): a.e(f"v_mov_b32 {v(24+k)}, {v(9+k)}")
        for k in range(4): a.e(f"v_mov_b32 {v(28+k)}, {v(17+k)}")
        a.e(f"ds_write_b128 v3, v[24:27] offset:{2*CP_STRIDE}")
        a.e(f"ds_write_b128 v3, v[28:31] offset:{3*CP_STRIDE}")
        a.e(f"s_mov_b64 exec, {s(sEx,2)}")
    a.e(f"s_mov_b32 {s(sT4)}, {s(sV)}")
    task(sT4)
    L = a.newlab("exp2")
    a.e(f"s_cmp_ge_u32 {s(sV)}, 7")
    a.e(f"s_cbranch_scc1 {L}")
    a.nop(2)
    a.e(f"s_add_u32 {s(sT4)}, {s(sV)}, 8")
    task(sT4)
    a.lab(L)
    a.e("s_waitcnt lgkmcnt(0)")

def chan_of_slot(a, dst, slot_sreg):
    L1 = a.newlab("cs"); L2 = a.newlab("cs")
    a.e(f"s_cmp_eq_u32 {s(slot_sreg)}, 2")
    a.e(f"s_cbranch_scc1 {L1}")
    a.e(f"s_mul_i32 {s(dst)}, {s(sE)}, 3")
    a.e(f"s_add_u32 {s(dst)}, {s(dst)}, {s(sP5)}")
    a.e(f"s_add_u32 {s(dst)}, {s(dst)}, {s(slot_sreg)}")
    a.e(f"s_branch {L2}")
    a.lab(L1)
    a.e(f"s_add_u32 {s(dst)}, {s(sP5)}, 2")
    a.lab(L2)

def load_ut(a):
    a.c("==== B: u^T of own channels -> LDS (padded blocks of 80 B) ====")
    a.e(f"s_lshl_b32 {s(sT)}, {s(sV)}, 6")
    a.e(f"v_add_u32 v2, {s(sT)}, v0")
    a.e(f"v_mul_u32_u24 v3, 423, v2")
    a.e(f"v_lshrrev_b32 v3, 16, v3")
    for t_ in range(512): assert (t_ * 423) >> 16 == t_ // 155, t_
    a.e(f"v_mul_u32_u24 v4, {UTL_STRIDE - 155*16}, v3")
    a.e(f"v_lshl_add_u32 v4, v2, 4, v4")
    a.e(f"v_add_u32 v4, {L_UTL}, v4")
    for k in range(4): a.e(f"v_mov_b32 {v(8+k)}, 0")
    a.e(f"v_cmp_gt_u32 vcc, 465, v2")
    a.e(f"s_and_saveexec_b64 {s(sEx,2)}, vcc")
    a.e(f"ds_write_b128 v4, v[8:11]")
    a.e(f"s_mov_b64 exec, {s(sEx,2)}")
    def task(sreg):
        a.e(f"s_mul_i32 {s(sCS)}, {s(sreg)}, 13108")
        a.e(f"s_lshr_b32 {s(sCS)}, {s(sCS)}, 16")
        a.e(f"s_mul_i32 {s(sT3)}, {s(sCS)}, 5")
        a.e(f"s_sub_u32 {s(sT3)}, {s(sreg)}, {s(sT3)}")
        chan_of_slot(a, sCH, sCS)
        a.e(f"s_lshl_b32 {s(sT2)}, {s(sT3)}, 6")
        a.e(f"v_add_u32 v2, {s(sT2)}, v0")
        a.e(f"v_mul_u32_u24 v3, 13108, v2")
        a.e(f"v_lshrrev_b32 v3, 16, v3")
        a.e(f"v_mul_u32_u24 v4, 5, v3")
        a.e(f"v_sub_u32 v4, v2, v4")
        a.e(f"v_and_b32 v4, 3, v4")
        a.e(f"v_lshlrev_b32 v3, 6, v3")
        a.e(f"v_lshl_add_u32 v3, v4, 4, v3")
        a.e(f"s_lshl_b32 {s(sT2)}, {s(sCH)}, 12")
        a.e(f"s_add_u32 {s(sT2)}, {s(sT2)}, {WS_UT}")
        a.e(f"s_mul_i32 {s(sT)}, {s(sCS)}, {UTL_STRIDE}")
        a.e(f"s_lshl_b32 {s(sT3)}, {s(sT3)}, 10")
        a.e(f"s_add_u32 {s(sT)}, {s(sT)}, {s(sT3)}")
        a.e(f"s_add_u32 m0, {s(sT)}, {L_UTL + UTL_Z}")
        a.e("s_nop 0")
        a.e(f"buffer_load_dwordx4 v3, {s(SWS,4)}, {s(sT2)} offen sc1 lds")
    for e in range(320): assert (e * 13108) >> 16 == e // 5
    a.e(f"s_mov_b32 {s(sT4)}, {s(sV)}")
    task(sT4)
    L = a.newlab("ut2")
    a.e(f"s_cmp_ge_u32 {s(sV)}, 7")
    a.e(f"s_cbranch_scc1 {L}")
    a.e(f"s_add_u32 {s(sT4)}, {s(sV)}, 8")
    task(sT4)
    a.lab(L)
    a.e("s_waitcnt vmcnt(0) lgkmcnt(0)")
    a.e("s_barrier")

def conv(a):
    a.c("==== B: Toeplitz convolution on MFMA ====")
    L6 = a.newlab("cv6"); Ld = a.newlab("cvd"); Lidle = a.newlab("cv_idle")
    a.e(f"s_cmp_ge_u32 {s(sV)}, 6")
    a.e(f"s_cbranch_scc1 {L6}")
    a.e(f"s_cmp_ge_u32 {s(sV)}, 3")
    a.e(f"s_cselect_b32 {s(sCS)}, 1, 0")
    a.e(f"s_mul_i32 {s(sT)}, {s(sCS)}, 3")
    a.e(f"s_sub_u32 {s(sUnit)}, {s(sV)}, {s(sT)}")
    a.e(f"s_branch {Ld}")
    a.lab(L6)
    a.e(f"s_mov_b32 {s(sCS)}, 2")
    a.e(f"s_sub_u32 {s(sT)}, {s(sV)}, 5")
    a.e(f"s_cmp_eq_u32 {s(sV)}, 6")
    a.e(f"s_cselect_b32 {s(sT2)}, 0, 3")
    a.e(f"s_cmp_eq_u32 {s(sE)}, 0")
    a.e(f"s_cselect_b32 {s(sUnit)}, {s(sT)}, {s(sT2)}")
    a.lab(Ld)
    acc = 16
    a.e(f"s_cmp_eq_u32 {s(sUnit)}, 3")
    a.e(f"s_cbranch_scc1 {Lidle}")
    a.e(f"v_and_b32 v2, 31, v0")
    a.e(f"v_lshrrev_b32 v3, 5, v0")
    a.e(f"v_sub_u32 v4, 3, v2")
    a.e(f"v_and_b32 v4, 3, v4")
    a.e(f"s_cmp_eq_u32 {s(sUnit)}, 2")
    a.e(f"s_cselect_b32 {s(sT)}, 32, 0")
    a.e(f"s_add_u32 {s(sT)}, {s(sT)}, 31")
    a.e(f"s_lshl_b32 {s(sT)}, {s(sT)}, 5")
    a.e(f"s_sub_u32 {s(sT)}, 2047, {s(sT)}")
    a.e(f"v_sub_u32 v5, {s(sT)}, v2")
    a.e(f"v_lshl_add_u32 v5, v3, 3, v5")
    a.e(f"v_sub_u32 v5, v5, v4")
    a.e(f"v_lshlrev_b32 v5, 1, v5")
    a.e(f"v_mul_u32_u24 v4, {CP_STRIDE}, v4")
    a.e(f"v_add_u32 v5, v5, v4")
    a.e(f"s_mul_i32 {s(sT)}, {s(sCS)}, {CH_STRIDE}")
    a.e(f"v_add_u32 v5, {s(sT)}, v5")
    a.e(f"s_cmp_eq_u32 {s(sUnit)}, 1")
    a.e(f"s_cselect_b32 {s(sT)}, 32, 0")
    a.e(f"v_add_u32 v6, {s(sT)}, v2")
    a.e(f"v_mul_u32_u24 v6, 80, v6")
    a.e(f"v_lshl_add_u32 v6, v3, 4, v6")
    a.e(f"s_mul_i32 {s(sT)}, {s(sCS)}, {UTL_STRIDE}")
    a.e(f"s_add_u32 {s(sT)}, {s(sT)}, {L_UTL + UTL_Z - 80*31}")
    a.e(f"v_add_u32 v6, {s(sT)}, v6")
    steps = [(dp, ks) for dp in range(32) for ks in range(2)]
    NB = 4
    FA = [32 + 8*i for i in range(NB)]; FB = [36 + 8*i for i in range(NB)]
    def rd(n):
        dp, ks = steps[n]; st = n % NB
        oa = 2 * (32 * (31 - dp) + 16 * ks)
        a.e(f"ds_read_b64 {v(FA[st],2)}, v5 offset:{oa}")
        a.e(f"ds_read_b64 {v(FA[st]+2,2)}, v5 offset:{oa+8}")
        a.e(f"ds_read_b128 {v(FB[st],4)}, v6 offset:{80*(31-dp) + 32*ks}")
    for n in range(NB - 1): rd(n)
    for n in range(64):
        if n + NB - 1 < 64:
            rd(n + NB - 1)
            a.e(f"s_waitcnt lgkmcnt({3*(NB-1)})")
        else:
            a.e(f"s_waitcnt lgkmcnt({3*(63-n)})")
        st = n % NB
        cin = "0" if n == 0 else v(acc, 16)
        a.e(f"v_mfma_f32_32x32x16_bf16 {v(acc,16)}, {v(FA[st],4)}, {v(FB[st],4)}, {cin}")
    a.nop(14)
    a.lab(Lidle)
    a.e("s_barrier")
    PART = 0; STG = 16384
    Ln2 = a.newlab("cv_n2")
    a.e(f"v_lshlrev_b32 v2, 4, v0")
    a.e(f"s_lshl_b32 {s(sT)}, {s(sCS)}, 12")
    a.e(f"v_add_u32 v2, {s(sT)}, v2")
    a.e(f"s_cmp_lg_u32 {s(sUnit)}, 2")
    a.e(f"s_cbranch_scc1 {Ln2}")
    for q in range(4): a.e(f"ds_write_b128 v2, {v(acc+4*q,4)} offset:{PART + 1024*q}")
    a.e("s_waitcnt lgkmcnt(0)")
    a.lab(Ln2)
    a.e("s_barrier")
    Lfin = a.newlab("cv_fin"); Lno = a.newlab("cv_noadd")
    a.e(f"s_cmp_ge_u32 {s(sUnit)}, 2")
    a.e(f"s_cbranch_scc1 {Lfin}")
    a.e(f"s_cmp_eq_u32 {s(sUnit)}, 0")
    a.e(f"s_cbranch_scc1 {Lno}")
    for q in range(4): a.e(f"ds_read_b128 {v(32+4*q,4)}, v2 offset:{PART + 1024*q}")
    a.e("s_waitcnt lgkmcnt(0)")
    for r in range(16): a.e(f"v_add_f32 {v(acc+r)}, {v(acc+r)}, {v(32+r)}")
    a.lab(Lno)
    for i in range(8): a.e(f"v_cvt_pk_bf16_f32 {v(32+i)}, {v(acc+2*i)}, {v(acc+2*i+1)}")
    a.e(f"v_and_b32 v3, 31, v0")
    a.e(f"v_lshlrev_b32 v3, 6, v3")
    a.e(f"v_lshrrev_b32 v4, 5, v0")
    a.e(f"v_lshl_add_u32 v3, v4, 3, v3")
    a.e(f"s_lshl_b32 {s(sT)}, {s(sV)}, 11")
    a.e(f"s_add_u32 {s(sT)}, {s(sT)}, {STG}")
    a.e(f"v_add_u32 v3, {s(sT)}, v3")
    for g in range(4): a.e(f"ds_write_b64 v3, {v(32+2*g,2)} offset:{16*g}")
    a.e(f"v_lshlrev_b32 v4, 4, v0")
    a.e(f"v_add_u32 v5, {s(sT)}, v4")
    a.e("s_waitcnt lgkmcnt(0)")
    a.e(f"ds_read_b128 v[40:43], v5")
    a.e(f"ds_read_b128 v[44:47], v5 offset:1024")
    chan_of_slot(a, sCH, sCS)
    a.e(f"s_lshl_b32 {s(sT2)}, {s(sCH)}, 12")
    a.e(f"s_lshl_b32 {s(sT3)}, {s(sUnit)}, 11")
    a.e(f"s_add_u32 {s(sT2)}, {s(sT2)}, {s(sT3)}")
    a.e(f"s_add_u32 {s(sT2)}, {s(sT2)}, {WS_YT}")
    a.e("s_waitcnt lgkmcnt(1)")
    a.e(f"buffer_store_dwordx4 v[40:43], v4, {s(SWS,4)}, {s(sT2)} offen sc1")
    a.e("s_waitcnt lgkmcnt(0)")
    a.e(f"buffer_store_dwordx4 v[44:47], v4, {s(SWS,4)}, {s(sT2)} offen offset:1024 sc1")
    a.lab(Lfin)
    a.e("s_waitcnt vmcnt(0)")
    a.e("s_barrier")
    flag_off(a, sT2, "B3")
    global_arrive(a, 2, 3, sT2)

def finalA(a):
    a.c("==== B: y^T tile -> out[:, 0:640] ====")
    wait_counter(a, "B3", 32, 2, 3)
    def one():
        a.e(f"v_lshrrev_b32 v3, 3, v2")
        a.e(f"v_lshlrev_b32 v3, 12, v3")
        a.e(f"v_and_b32 v4, 7, v2")
        a.e(f"v_lshl_add_u32 v3, v4, 4, v3")
        a.e(f"buffer_load_dwordx4 v3, {s(SWS,4)}, {s(sT2)} offen sc1 lds")
    a.e(f"s_mul_i32 {s(sT2)}, {s(sC)}, {80*4096}")
    a.e(f"s_lshl_b32 {s(sT3)}, {s(sM)}, 7")
    a.e(f"s_add_u32 {s(sT2)}, {s(sT2)}, {s(sT3)}")
    a.e(f"s_add_u32 {s(sT2)}, {s(sT2)}, {WS_YT}")
    a.e(f"s_lshl_b32 {s(sT)}, {s(sV)}, 6")
    a.e(f"v_add_u32 v2, {s(sT)}, v0")
    a.e(f"s_lshl_b32 m0, {s(sV)}, 10")
    one()
    L = a.newlab("fa2")
    a.e(f"s_cmp_ge_u32 {s(sV)}, 2")
    a.e(f"s_cbranch_scc1 {L}")
    a.e(f"v_add_u32 v2, 512, v2")
    a.e(f"s_lshl_b32 {s(sT)}, {s(sV)}, 10")
    a.e(f"s_add_u32 m0, {s(sT)}, 8192")
    one()
    a.lab(L)
    def task(sreg):
        a.e(f"s_and_b32 {s(sT2)}, {s(sreg)}, 3")
        a.e(f"s_lshr_b32 {s(sT3)}, {s(sreg)}, 2")
        a.e(f"v_lshrrev_b32 v2, 4, v0")
        a.e(f"s_lshl_b32 {s(sT)}, {s(sT3)}, 2")
        a.e(f"v_add_u32 v2, {s(sT)}, v2")
        a.e(f"v_min_u32 v2, 9, v2")
        a.e(f"v_and_b32 v3, 15, v0")
        a.e(f"s_lshl_b32 {s(sT)}, {s(sM)}, 2")
        a.e(f"s_add_u32 {s(sT)}, {s(sT)}, {s(sT2)}")
        a.e(f"s_lshl_b32 {s(sT)}, {s(sT)}, 4")
        a.e(f"v_add_u32 v4, {s(sT)}, v3")
        a.e(f"v_mul_u32_u24 v5, 1280, v4")
        a.e(f"v_lshl_add_u32 v5, v2, 4, v5")
        a.e(f"s_mul_i32 {s(sT)}, {s(sC)}, 160")
        a.e(f"buffer_load_dwordx4 v[8:11], v5, {s(SU,4)}, {s(sT)} offen")
        a.e(f"v_lshlrev_b32 v6, 4, v2")
        a.e(f"v_add_u32 v6, {s(sT)}, v6")
        a.e(f"global_load_dwordx4 v[12:15], v6, {s(sPD,2)}")
        a.e(f"v_mul_u32_u24 v7, 2560, v4")
        a.e(f"v_lshl_add_u32 v7, v2, 4, v7")
        a.e(f"v_lshlrev_b32 v5, 3, v2")
        a.e(f"v_bfe_u32 v6, v0, 2, 2")
        a.e(f"v_add_u32 v5, v5, v6")
        a.e(f"v_lshlrev_b32 v5, 7, v5")
        a.e(f"v_and_b32 v6, 3, v0")
        a.e(f"v_lshl_add_u32 v5, v6, 3, v5")
        a.e(f"s_lshl_b32 {s(sT2)}, {s(sT2)}, 5")
        a.e(f"v_add_u32 v5, {s(sT2)}, v5")
        a.e(f"ds_read_b64_tr_b16 v[16:17], v5")
        a.e(f"ds_read_b64_tr_b16 v[18:19], v5 offset:512")
        a.e("s_waitcnt vmcnt(0) lgkmcnt(0)")
        for k in range(4):
            a.e(f"v_lshlrev_b32 v20, 16, {v(8+k)}")
            a.e(f"v_and_b32 v21, 0xffff0000, {v(8+k)}")
            a.e(f"v_lshlrev_b32 v22, 16, {v(12+k)}")
            a.e(f"v_and_b32 v23, 0xffff0000, {v(12+k)}")
            a.e(f"v_mul_f32 v20, v20, v22")
            a.e(f"v_mul_f32 v21, v21, v23")
            a.e(f"v_cvt_pk_bf16_f32 v20, v20, v21")
            a.e(f"v_and_b32 v21, 0xffff0000, v20")
            a.e(f"v_lshlrev_b32 v20, 16, v20")
            a.e(f"v_lshlrev_b32 v22, 16, {v(16+k)}")
            a.e(f"v_and_b32 v23, 0xffff0000, {v(16+k)}")
            a.e(f"v_add_f32 v20, v20, v22")
            a.e(f"v_add_f32 v21, v21, v23")
            a.e(f"v_cvt_pk_bf16_f32 {v(24+k)}, v20, v21")
        Lm = a.newlab("fam")
        a.e(f"s_cmp_eq_u32 {s(sT3)}, 2")
        a.e(f"s_cselect_b32 {s(sT2)}, 0, -1")
        a.e(f"s_mov_b32 exec_hi, {s(sT2)}")
        a.e(f"s_mul_i32 {s(sT)}, {s(sC)}, 160")
        a.e(f"buffer_store_dwordx4 v[24:27], v7, {s(SOUT,4)}, {s(sT)} offen")
        a.e("s_mov_b64 exec, -1")
    a.e("s_waitcnt vmcnt(0)")
    a.e("s_barrier")
    a.e(f"s_mov_b32 {s(sT4)}, {s(sV)}")
    task(sT4)
    L = a.newlab("fa3")
    a.e(f"s_cmp_ge_u32 {s(sV)}, 4")
    a.e(f"s_cbranch_scc1 {L}")
    a.nop(2)
    a.e(f"s_add_u32 {s(sT4)}, {s(sV)}, 8")
    task(sT4)
    a.lab(L)

def outproj(a):
    a.c("==== B: output projection ====")
    AR = 96
    a.e("s_barrier")
    W = [2, 3, 4]
    a.e(f"s_mul_i32 {s(sT2)}, {s(sV)}, 20480")
    a.e(f"s_mul_i32 {s(sT3)}, {s(sJ)}, 160")
    a.e(f"s_add_u32 {s(sT2)}, {s(sT2)}, {s(sT3)}")
    for i, r in enumerate(W):
        a.e(f"v_add_u32 v20, {64*i}, v0")
        a.e(f"v_mul_u32_u24 v21, 6554, v20")
        a.e(f"v_lshrrev_b32 v21, 16, v21")
        a.e(f"v_mul_u32_u24 v21, 1120, v21")
        a.e(f"v_lshl_add_u32 v21, v20, 4, v21")
        a.e(f"v_add_u32 {v(r)}, {s(sT2)}, v21")
    def dma128(row0, ldsbase):
        a.e(f"s_mov_b32 {s(sT3)}, {row0*1280}")
        a.e(f"s_mul_i32 {s(sT4)}, {s(sV)}, 2560")
        a.e(f"s_add_u32 m0, {s(sT4)}, {ldsbase}")
        a.e("s_nop 0")
        a.e(f"buffer_load_dwordx4 {v(W[0])}, {s(SWO,4)}, {s(sT3)} offen lds")
        a.e(f"s_add_u32 m0, {s(sT4)}, {ldsbase+1024}")
        a.e("s_nop 0")
        a.e(f"buffer_load_dwordx4 {v(W[1])}, {s(SWO,4)}, {s(sT3)} offen lds")
        a.e(f"s_add_u32 m0, {s(sT4)}, {ldsbase+2048}")
        a.e("s_mov_b32 exec_hi, 0")
        a.e(f"buffer_load_dwordx4 {v(W[2])}, {s(SWO,4)}, {s(sT3)} offen lds")
        a.e("s_mov_b32 exec_hi, -1")
    dma128(512, 0)
    a.e(f"v_lshrrev_b32 v5, 4, v0")
    a.e(f"v_lshlrev_b32 v5, 3, v5")
    a.e(f"v_bfe_u32 v6, v0, 2, 2")
    a.e(f"v_add_u32 v5, v5, v6")
    a.e(f"v_mul_u32_u24 v5, 160, v5")
    a.e(f"v_and_b32 v6, 3, v0")
    a.e(f"v_lshl_add_u32 v5, v6, 3, v5")
    a.e(f"s_lshr_b32 {s(sCS)}, {s(sV)}, 1")
    a.e(f"s_and_b32 {s(sUnit)}, {s(sV)}, 1")
    a.e(f"s_mul_i32 {s(sT)}, {s(sCS)}, {32*160}")
    a.e(f"v_add_u32 v6, {s(sT)}, v5")
    a.e("s_waitcnt vmcnt(0)")
    a.e("s_barrier")
    for mt in range(5):
        a.e(f"ds_read_b64_tr_b16 {v(AR+4*mt,2)}, v6 offset:{32*mt}")
        a.e(f"ds_read_b64_tr_b16 {v(AR+4*mt+2,2)}, v6 offset:{32*mt+640}")
    a.e("s_waitcnt lgkmcnt(0)")
    a.e("s_barrier")
    for blk in range(4):
        dma128(128 * blk, 20480 * blk)
    a.e(f"s_mul_i32 {s(sT)}, {s(sCS)}, 20480")
    a.e(f"v_add_u32 v6, {s(sT)}, v5")
    a.e(f"v_lshlrev_b32 v7, 4, v0")
    a.e(f"s_mul_i32 {s(sT3)}, {s(sQB)}, 81920")
    a.e(f"s_mul_i32 {s(sT4)}, {s(sUnit)}, 40960")
    a.e(f"s_add_u32 {s(sT3)}, {s(sT3)}, {s(sT4)}")
    a.e(f"s_add_u32 {s(sT3)}, {s(sT3)}, {WS_O}")
    a.e(f"s_lshl_b32 {s(sT4)}, {s(sCS)}, 12")
    a.e(f"s_add_u32 {s(sCH)}, {s(sT3)}, {s(sT4)}")
    a.e(f"s_lshl_b32 {s(sT4)}, {s(sCS)}, 10")
    a.e(f"s_add_u32 {s(sP5)}, {s(sT3)}, {s(sT4)}")
    a.e(f"s_add_u32 {s(sP5)}, {s(sP5)}, {16*1024}")
    a.e("s_waitcnt vmcnt(0)")
    stamp(a, 9)
    wait_counter(a, "B2", 8, 2, 3)
    stamp(a, 10)
    BF = 8
    for k in range(4):
        for n2 in range(2):
            if n2 == 0:
                a.e(f"buffer_load_dwordx4 {v(BF+4*(2*k),4)}, v7, {s(SWS,4)}, {s(sCH)} offen offset:{1024*k} sc1")
            else:
                a.e(f"s_add_u32 {s(sT)}, {s(sCH)}, 20480")
                a.e(f"buffer_load_dwordx4 {v(BF+4*(2*k+1),4)}, v7, {s(SWS,4)}, {s(sT)} offen offset:{1024*k} sc1")
    a.e(f"buffer_load_dwordx4 {v(BF+32,4)}, v7, {s(SWS,4)}, {s(sP5)} offen sc1")
    a.e(f"s_add_u32 {s(sT)}, {s(sP5)}, 20480")
    a.e(f"buffer_load_dwordx4 {v(BF+36,4)}, v7, {s(SWS,4)}, {s(sT)} offen sc1")
    acc = 48
    FA = [88, 92]
    first = True
    seq = [(k, mt) for k in range(4) for mt in range(5)]
    def rdA(i):
        k, mt = seq[i]; st = i % 2
        a.e(f"ds_read_b64_tr_b16 {v(FA[st],2)}, v6 offset:{k*32*160 + 32*mt}")
        a.e(f"ds_read_b64_tr_b16 {v(FA[st]+2,2)}, v6 offset:{k*32*160 + 32*mt + 640}")
    rdA(0)
    for i, (k, mt) in enumerate(seq):
        if i + 1 < len(seq):
            rdA(i + 1)
            a.e("s_waitcnt lgkmcnt(2)")
        else:
            a.e("s_waitcnt lgkmcnt(0)")
        if mt == 0:
            a.e(f"s_waitcnt vmcnt({10 - 2*(k+1)})")
        st = i % 2
        for n2 in range(2):
            d = acc + 8*mt + 4*n2
            cin = "0" if k == 0 else v(d, 4)
            a.e(f"v_mfma_f32_16x16x32_bf16 {v(d,4)}, {v(FA[st],4)}, {v(BF+4*(2*k+n2),4)}, {cin}")
    a.e("s_waitcnt vmcnt(0)")
    for mt in range(5):
        for n2 in range(2):
            d = acc + 8*mt + 4*n2
            a.e(f"v_mfma_f32_16x16x32_bf16 {v(d,4)}, {v(AR+4*mt,4)}, {v(BF+32+4*n2,4)}, {v(d,4)}")
    a.nop(10)
    a.e("s_barrier")
    a.e(f"s_lshl_b32 {s(sT)}, {s(sUnit)}, 2")
    a.e(f"s_add_u32 {s(sT)}, {s(sT)}, {s(sCS)}")
    a.e(f"s_mul_i32 {s(sT)}, {s(sT)}, 10240")
    a.e(f"v_add_u32 v2, {s(sT)}, v7")
    for t_ in range(10):
        a.e(f"ds_write_b128 v2, {v(acc+4*t_,4)} offset:{1024*t_}")
    a.e("s_waitcnt lgkmcnt(0)")
    a.e("s_barrier")
    a.e(f"s_mul_i32 {s(sT)}, {s(sUnit)}, 40960")
    a.e(f"s_lshl_b32 {s(sT2)}, {s(sCS)}, 10")
    a.e(f"s_add_u32 {s(sT)}, {s(sT)}, {s(sT2)}")
    a.e(f"v_add_u32 v2, {s(sT)}, v7")
    a.e(f"v_and_b32 v3, 15, v0")
    a.e(f"s_lshl_b32 {s(sT)}, {s(sQB)}, 1")
    a.e(f"s_add_u32 {s(sT)}, {s(sT)}, {s(sUnit)}")
    a.e(f"s_lshl_b32 {s(sT)}, {s(sT)}, 5")
    a.e(f"v_add_u32 v3, {s(sT)}, v3")
    a.e(f"v_mul_u32_u24 v3, 2560, v3")
    a.e(f"v_lshrrev_b32 v4, 4, v0")
    a.e(f"v_lshl_add_u32 v3, v4, 3, v3")
    a.e(f"s_mul_i32 {s(sT3)}, {s(sJ)}, 160")
    a.e(f"s_add_u32 {s(sT3)}, {s(sT3)}, 1280")
    for i in range(3):
        Ls = a.newlab("op_t")
        if i == 2:
            a.e(f"s_cmp_ge_u32 {s(sCS)}, 2")
            a.e(f"s_cbranch_scc1 {Ls}")
        for p in range(4):
            a.e(f"ds_read_b128 {v(8+4*p,4)}, v2 offset:{p*10240 + 4096*i}")
        a.e(f"s_add_u32 {s(sT)}, {s(sCS)}, {4*i}")
        a.e(f"s_lshr_b32 {s(sT2)}, {s(sT)}, 1")
        a.e(f"s_lshl_b32 {s(sT2)}, {s(sT2)}, 5")
        a.e(f"s_and_b32 {s(sT)}, {s(sT)}, 1")
        a.e(f"s_mul_i32 {s(sT)}, {s(sT)}, {16*2560}")
        a.e(f"s_add_u32 {s(sT)}, {s(sT)}, {s(sT2)}")
        a.e(f"s_add_u32 {s(sT)}, {s(sT)}, {s(sT3)}")
        a.e("s_waitcnt lgkmcnt(0)")
        for r in range(4):
            a.e(f"v_add_f32 {v(8+r)}, {v(8+r)}, {v(12+r)}")
            a.e(f"v_add_f32 {v(16+r)}, {v(16+r)}, {v(20+r)}")
        for r in range(4):
            a.e(f"v_add_f32 {v(8+r)}, {v(8+r)}, {v(16+r)}")
        a.e(f"v_cvt_pk_bf16_f32 v24, v8, v9")
        a.e(f"v_cvt_pk_bf16_f32 v25, v10, v11")
        a.e(f"buffer_store_dwordx2 v[24:25], v3, {s(SOUT,4)}, {s(sT)} offen")
        a.nop(2)
        if i == 2: a.lab(Ls)

def emit_B(a, opts):
    parts = opts.get("parts", "kv,ut,kg,conv,fin,op").split(",")
    stamp(a, 0)
    ids(a)
    a.e(f"v_mov_b32 v2, {L_CNT}")
    a.e(f"v_mov_b32 v3, 0")
    a.e(f"ds_write_b32 v2, v3")
    a.e("s_waitcnt lgkmcnt(0)")
    a.e("s_waitcnt lgkmcnt(0)")
    nonce_make(a)
    if "ut" in parts: u_tile_load(a)
    if "kg" in parts: kgen_loads(a)
    if "kv" in parts: kvproj(a)
    stamp(a, 1)
    nonce_issue(a, SDBG, vNZ, vNC)
    if "ut" in parts or "kg" in parts:
        Lkg = a.newlab("role_kg"); Lj = a.newlab("role_join")
        a.e(f"s_cmp_lt_u32 {s(sV)}, 3")
        a.e(f"s_cbranch_scc1 {Lkg}")
        a.e("s_waitcnt vmcnt(0)")
        nonce_get(a, SDBG, vNZ, vNC, sNonce, sPC)
        a.e("s_barrier")
        stamp(a, 16)
        if "ut" in parts: u_transpose(a)
        stamp(a, 17)
        a.e(f"s_branch {Lj}")
        a.lab(Lkg)
        a.e("s_waitcnt vmcnt(0)")
        nonce_get(a, SDBG, vNZ, vNC, sNonce, sPC)
        a.e("s_barrier")
        stamp(a, 16)
        if "kg" in parts: kgen(a)
        stamp(a, 17)
        a.lab(Lj)
        a.e("s_barrier")
    stamp(a, 2)
    if "kg" in parts:
        expand(a)
    stamp(a, 3)
    if "conv" in parts:
        wait_counter(a, "B0", 32, 2, 3)
        stamp(a, 4)
        load_ut(a)
        stamp(a, 5)
        conv(a)
    stamp(a, 6)
    if "fin" in parts: finalA(a)
    stamp(a, 7)
    if "op" in parts: outproj(a)
    stamp(a, 11)
    stamp_flush(a, 18, SWS, sV, 2, 3)
```

```python
import sys
from common import *
import common
import typeA
HEADER = open("cdna_kernels/" + KNAME + ".s.ref").read().split("; Override launch geometry")[0]
opts_g = {}
def build(path, enableA=True, enableB=True, Bopts=None):
    a = Asm()
    K = KNAME + "_kernel"
    out = HEADER
    out += "; Two workgroups per CU: ids 0..255 = SSM / projections role, ids 256..511 = attention role.\n"
    out += f"; @launch grid=(512,1,1) block=(512,1,1) lds={LDS_BYTES}\n"
    out += '.amdgcn_target "amdgcn-amd-amdhsa--gfx950"\n.text\n'
    out += f".globl {K}\n.p2align 8\n.type {K},@function\n{K}:\n"
    a.e("s_cmp_ge_u32 s2, 512")
    a.e("s_cbranch_scc1 L_exit")
    if opts_g.get("cpf", "1") == "1":
        code_prefetch(a, K, "L_code_end", 126, 127, 92)
    a.e("s_cmp_lt_u32 s2, 256")
    a.e("s_cbranch_scc1 L_roleB")
    if enableA:
        typeA.emit_A(a)
    a.lab("L_exit")
    a.e("s_endpgm")
    a.L.append(".p2align 6")
    a.lab("L_roleB")
    if enableB:
        import typeB
        typeB.emit_B(a, Bopts or {})
    a.e("s_endpgm")
    a.lab("L_code_end")
    out += a.text()
    out += f'''.section .rodata,"a"
.p2align 6
.amdhsa_kernel {K}
  .amdhsa_next_free_vgpr 128
  .amdhsa_next_free_sgpr 102
  .amdhsa_accum_offset 128
  .amdhsa_group_segment_fixed_size 0
  .amdhsa_kernarg_size 136
  .amdhsa_user_sgpr_count 2
  .amdhsa_user_sgpr_kernarg_segment_ptr 1
  .amdhsa_system_sgpr_workgroup_id_x 1
.end_amdhsa_kernel
'''
    open(path, "w").write(out)
if __name__ == "__main__":
    path = sys.argv[1]
    opts = dict(x.split("=") for x in sys.argv[2:])
    typeA.OPT.update(opts); opts_g.update(opts)
    common.PROF = opts.get('PROF', '0') == '1'
    build(path, enableA=opts.get("A", "1") == "1", enableB=opts.get("B", "1") == "1", Bopts=opts)
```

```python
from asmlib import *
KNAME = "concat_heads__ssm_conv_s4__grouped_kv_mqa__prompt"
KA = dict(u=0, Are=8, Aim=16, Bre=24, Bim=32, Cre=40, Cim=48, ldt=56, Dskip=64, x=72, wq=80, wk=88, wv=96,
          wo=104, out=112, dbg=120, ws=128)
WS_KV = 0
WS_UT = 0x40000
WS_YT = 0x2C0000
WS_O  = 0x540000
WS_SIZE = 0x848000
XSIZE = 2048 * 640 * 2
WSIZE = 640 * 640 * 2
WKVSIZE = 640 * 20 * 2
PSIZE = 640 * 128 * 2
OUTSIZE = 2048 * 1280 * 2
SRD3 = 0x20000
LDS_BYTES = 81920
SPIN_MAX = 20000
WS_MB = 0x30000
MB_NONCE = WS_MB
MB_B0 = WS_MB + 0x1000
MB_B3 = WS_MB + 0x3000
MB_B1 = 0x840000
B1_REP = 8
MB_KMAX = WS_MB + 0x7800
MB_B2 = WS_MB + 0x8000
KMAX_OFF = 1536 + 22*16
def DBG_B1(sh): return 64 * sh
DBG_KMAX = 4
def f32bits(x):
    import struct
    return struct.unpack("<I", struct.pack("<f", x))[0]
def hexf(x): return "0x%08x" % f32bits(x)

def srd(a, sreg, ka_name, size):
    a.e(f"s_load_dwordx2 {s(sreg,2)}, s[0:1], {KA[ka_name]}")
def srd_fin(a, sreg, size):
    a.e(f"s_mov_b32 {s(sreg+2)}, {size}")
    a.e(f"s_mov_b32 {s(sreg+3)}, 0x20000")

def poll_flags(a, ws_srd, vaddr, vtmp, snonce, lanes_mask, scnt, smask, name, sleep=4, slow=0, pair=False):
    L = a.newlab("poll_" + name); Lo = a.newlab("pollout_" + name); Lf = a.newlab("pollfast_" + name)
    a.e(f"s_mov_b32 {s(scnt)}, 0")
    a.lab(L)
    if pair == 4:
        a.e(f"buffer_load_dwordx4 {v(vtmp,4)}, {v(vaddr)}, {s(ws_srd,4)}, 0 offen sc1")
    elif pair:
        a.e(f"buffer_load_dwordx2 {v(vtmp,2)}, {v(vaddr)}, {s(ws_srd,4)}, 0 offen sc1")
    else:
        a.e(f"buffer_load_dword {v(vtmp)}, {v(vaddr)}, {s(ws_srd,4)}, 0 offen sc1")
    a.e(f"s_add_u32 {s(scnt)}, {s(scnt)}, 1")
    a.e("s_waitcnt vmcnt(0)")
    if pair == 4:
        for k in range(4): a.e(f"v_xor_b32 {v(vtmp+k)}, {s(snonce)}, {v(vtmp+k)}")
        a.e(f"v_or_b32 {v(vtmp)}, {v(vtmp)}, {v(vtmp+1)}")
        a.e(f"v_or_b32 {v(vtmp+2)}, {v(vtmp+2)}, {v(vtmp+3)}")
        a.e(f"v_or_b32 {v(vtmp)}, {v(vtmp)}, {v(vtmp+2)}")
        a.e(f"v_cmp_ne_u32 {s(smask,2)}, 0, {v(vtmp)}")
        a.nop(2)
    else:
        if pair:
            a.e(f"v_cmp_ne_u32 vcc, {s(snonce)}, {v(vtmp+1)}")
        a.e(f"v_cmp_ne_u32 {s(smask,2)}, {s(snonce)}, {v(vtmp)}")
        a.nop(2)
        if pair:
            a.e(f"s_or_b64 {s(smask,2)}, {s(smask,2)}, vcc")
    full = (1 << 64) - 1
    if lanes_mask != full:
        lo, hi = lanes_mask & 0xffffffff, lanes_mask >> 32
        a.e(f"s_and_b32 {s(smask)}, {s(smask)}, {hex(lo)}")
        a.e(f"s_and_b32 {s(smask+1)}, {s(smask+1)}, {hex(hi)}")
    a.e(f"s_cmp_eq_u64 {s(smask,2)}, 0")
    a.e(f"s_cbranch_scc1 {Lo}")
    a.e(f"s_cmp_gt_u32 {s(scnt)}, {SPIN_MAX}")
    a.e(f"s_cbranch_scc1 {Lo}")
    if slow:
        a.e(f"s_bcnt1_i32_b64 {s(smask)}, {s(smask,2)}")
        a.e(f"s_cmp_lt_u32 {s(smask)}, {bin(lanes_mask).count('1')}")
        a.e(f"s_cbranch_scc1 {Lf}")
        a.e(f"s_sleep {slow}")
        a.e(f"s_branch {L}")
        a.lab(Lf)
    if sleep: a.e(f"s_sleep {sleep}")
    a.e(f"s_branch {L}")
    a.lab(Lo)

def nonce_issue(a, dbg_srd, vz, vn):
    a.e(f"v_mov_b32 {v(vz)}, 0")
    a.e(f"buffer_load_dword {v(vn)}, {v(vz)}, {s(dbg_srd,4)}, 0 offen sc1")
def nonce_get(a, dbg_srd, vz, vn, snonce, scnt):
    L = a.newlab("nonce"); Lo = a.newlab("nonce_ok")
    a.e(f"s_mov_b32 {s(scnt)}, 0")
    a.lab(L)
    a.e(f"v_readfirstlane_b32 {s(snonce)}, {v(vn)}")
    a.nop(2)
    a.e(f"s_cmp_lg_u32 {s(snonce)}, 0")
    a.e(f"s_cbranch_scc1 {Lo}")
    a.e(f"s_add_u32 {s(scnt)}, {s(scnt)}, 1")
    a.e(f"s_cmp_gt_u32 {s(scnt)}, {SPIN_MAX}")
    a.e(f"s_cbranch_scc1 {Lo}")
    a.e("s_sleep 4")
    a.e(f"v_mov_b32 {v(vz)}, 0")
    a.e(f"buffer_load_dword {v(vn)}, {v(vz)}, {s(dbg_srd,4)}, 0 offen sc1")
    a.e("s_waitcnt vmcnt(0)")
    a.e(f"s_branch {L}")
    a.lab(Lo)
def flag_store(a, ws_srd, soff, snonce, vt0, vt1, lanes=1, lane_stride=0):
    if lanes == 1:
        a.e(f"v_mov_b32 {v(vt0)}, 0")
    else:
        a.e(f"v_mul_u32_u24 {v(vt0)}, {lane_stride}, v0")
    a.e(f"v_mov_b32 {v(vt1)}, {s(snonce)}")
    a.e(f"s_mov_b64 exec, {hex((1 << lanes) - 1)}")
    a.e(f"buffer_store_dword {v(vt1)}, {v(vt0)}, {s(ws_srd,4)}, {s(soff)} offen sc1")
    a.e("s_mov_b64 exec, -1")

def code_prefetch(a, kstart, kend_label, vt0, vt1, stmp):
    L = a.newlab("pc")
    a.e(f"s_getpc_b64 {s(stmp,2)}")
    a.lab(L)
    a.e(f"s_sub_u32 {s(stmp)}, {s(stmp)}, {L}-{kstart}")
    a.e(f"s_subb_u32 {s(stmp+1)}, {s(stmp+1)}, 0")
    a.e(f"s_lshr_b32 {s(stmp+2)}, s2, 3")
    a.e(f"s_lshl_b32 {s(stmp+2)}, {s(stmp+2)}, 9")
    a.e(f"v_and_b32 {v(vt0)}, 7, v0")
    a.e(f"v_lshlrev_b32 {v(vt0)}, 6, {v(vt0)}")
    a.e(f"v_add_u32 {v(vt0)}, {s(stmp+2)}, {v(vt0)}")
    a.e(f"v_min_u32 {v(vt0)}, {kend_label}-{kstart}-4, {v(vt0)}")
    a.e(f"global_load_dword {v(vt1)}, {v(vt0)}, {s(stmp,2)}")

PROF = False
WS_PROF = 0x7C0000
PROF_S0 = 60
def stamp(a, i, cyc=False):
    import common
    if not common.PROF: return
    a.e(f"{'s_memtime' if cyc else 's_memrealtime'} s[98:99]")
    a.e("s_waitcnt lgkmcnt(0)")
    a.e(f"s_mov_b32 {s(PROF_S0+i)}, s98")
def stamp_flush(a, n, ws_srd, swave, vt0, vt1):
    import common
    if not common.PROF: return
    a.e(f"s_lshl_b32 s59, s2, 3")
    a.e(f"s_add_u32 s59, s59, {s(swave)}")
    a.e(f"s_lshl_b32 s59, s59, 7")
    a.e(f"s_add_u32 s59, s59, {WS_PROF}")
    a.e(f"v_mov_b32 {v(vt0)}, 0")
    for i in range(n):
        a.e(f"v_mov_b32 {v(vt1)}, {s(PROF_S0+i)}")
        a.e(f"buffer_store_dword {v(vt1)}, {v(vt0)}, {s(ws_srd,4)}, s59 offen offset:{4*i}")
        a.e("s_nop 1")
    a.e("s_waitcnt vmcnt(0)")
```

```python
from common import *
def finalA(a, X):
    a.c("==== B: y^T tile -> out[:, 0:640] ====")
    L0 = a.newlab("nopoll")
    a.e(f"s_cmp_lg_u32 {s(X['sV'])}, 0")
    a.e(f"s_cbranch_scc1 {L0}")
    a.e(f"s_lshl_b32 {s(X['sT2'])}, {s(X['sC'])}, 10")
    a.e(f"s_add_u32 {s(X['sT2'])}, {s(X['sT2'])}, {MB_B3}")
    a.e(f"v_and_b32 v2, 31, v0")
    a.e(f"v_lshlrev_b32 v2, 2, v2")
    a.e(f"v_add_u32 v2, {s(X['sT2'])}, v2")
    poll_flags(a, X['SWS'], 2, 3, X['sNonce'], (1 << 32) - 1, X['sPC'], X['sPM'], "B3", sleep=4)
    a.lab(L0)
    a.e("s_barrier")
    def one():
        a.e(f"v_lshrrev_b32 v3, 3, v2")
        a.e(f"v_lshlrev_b32 v3, 12, v3")
        a.e(f"v_and_b32 v4, 7, v2")
        a.e(f"v_lshl_add_u32 v3, v4, 4, v3")
        a.e(f"buffer_load_dwordx4 v3, {s(X['SWS'],4)}, {s(X['sT2'])} offen sc1 lds")
    a.e(f"s_mul_i32 {s(X['sT2'])}, {s(X['sC'])}, {80*4096}")
    a.e(f"s_lshl_b32 {s(X['sT3'])}, {s(X['sM'])}, 7")
    a.e(f"s_add_u32 {s(X['sT2'])}, {s(X['sT2'])}, {s(X['sT3'])}")
    a.e(f"s_add_u32 {s(X['sT2'])}, {s(X['sT2'])}, {WS_YT}")
    a.e(f"s_lshl_b32 {s(X['sT'])}, {s(X['sV'])}, 6")
    a.e(f"v_add_u32 v2, {s(X['sT'])}, v0")
    a.e(f"s_lshl_b32 m0, {s(X['sV'])}, 10")
    one()
    L = a.newlab("fa2")
    a.e(f"s_cmp_ge_u32 {s(X['sV'])}, 2")
    a.e(f"s_cbranch_scc1 {L}")
    a.e(f"v_add_u32 v2, 512, v2")
    a.e(f"s_lshl_b32 {s(X['sT'])}, {s(X['sV'])}, 10")
    a.e(f"s_add_u32 m0, {s(X['sT'])}, 8192")
    one()
    a.lab(L)
    def task(sreg):
        a.e(f"s_and_b32 {s(X['sT2'])}, {s(sreg)}, 3")
        a.e(f"s_lshr_b32 {s(X['sT3'])}, {s(sreg)}, 2")
        a.e(f"v_lshrrev_b32 v2, 4, v0")
        a.e(f"s_lshl_b32 {s(X['sT'])}, {s(X['sT3'])}, 2")
        a.e(f"v_add_u32 v2, {s(X['sT'])}, v2")
        a.e(f"v_min_u32 v2, 9, v2")
        a.e(f"v_and_b32 v3, 15, v0")
        a.e(f"s_lshl_b32 {s(X['sT'])}, {s(X['sM'])}, 2")
        a.e(f"s_add_u32 {s(X['sT'])}, {s(X['sT'])}, {s(X['sT2'])}")
        a.e(f"s_lshl_b32 {s(X['sT'])}, {s(X['sT'])}, 4")
        a.e(f"v_add_u32 v4, {s(X['sT'])}, v3")
        a.e(f"v_mul_u32_u24 v5, 1280, v4")
        a.e(f"v_lshl_add_u32 v5, v2, 4, v5")
        a.e(f"s_mul_i32 {s(X['sT'])}, {s(X['sC'])}, 160")
        a.e(f"buffer_load_dwordx4 v[8:11], v5, {s(X['SU'],4)}, {s(X['sT'])} offen")
        a.e(f"v_lshlrev_b32 v6, 4, v2")
        a.e(f"v_add_u32 v6, {s(X['sT'])}, v6")
        a.e(f"global_load_dwordx4 v[12:15], v6, {s(X['sPD'],2)}")
        a.e(f"v_mul_u32_u24 v7, 2560, v4")
        a.e(f"v_lshl_add_u32 v7, v2, 4, v7")
        a.e(f"v_lshlrev_b32 v5, 3, v2")
        a.e(f"v_bfe_u32 v6, v0, 2, 2")
        a.e(f"v_add_u32 v5, v5, v6")
        a.e(f"v_lshlrev_b32 v5, 7, v5")
        a.e(f"v_and_b32 v6, 3, v0")
        a.e(f"v_lshl_add_u32 v5, v6, 3, v5")
        a.e(f"s_lshl_b32 {s(X['sT2'])}, {s(X['sT2'])}, 5")
        a.e(f"v_add_u32 v5, {s(X['sT2'])}, v5")
        a.e(f"ds_read_b64_tr_b16 v[16:17], v5")
        a.e(f"ds_read_b64_tr_b16 v[18:19], v5 offset:512")
        a.e("s_waitcnt vmcnt(0) lgkmcnt(0)")
        for k in range(4):
            a.e(f"v_lshlrev_b32 v20, 16, {v(8+k)}")
            a.e(f"v_and_b32 v21, 0xffff0000, {v(8+k)}")
            a.e(f"v_lshlrev_b32 v22, 16, {v(12+k)}")
            a.e(f"v_and_b32 v23, 0xffff0000, {v(12+k)}")
            a.e(f"v_mul_f32 v20, v20, v22")
            a.e(f"v_mul_f32 v21, v21, v23")
            a.e(f"v_cvt_pk_bf16_f32 v20, v20, v21")
            a.e(f"v_and_b32 v21, 0xffff0000, v20")
            a.e(f"v_lshlrev_b32 v20, 16, v20")
            a.e(f"v_lshlrev_b32 v22, 16, {v(16+k)}")
            a.e(f"v_and_b32 v23, 0xffff0000, {v(16+k)}")
            a.e(f"v_add_f32 v20, v20, v22")
            a.e(f"v_add_f32 v21, v21, v23")
            a.e(f"v_cvt_pk_bf16_f32 {v(24+k)}, v20, v21")
        Lm = a.newlab("fam")
        a.e(f"s_cmp_eq_u32 {s(X['sT3'])}, 2")
        a.e(f"s_cselect_b32 {s(X['sT2'])}, 0, -1")
        a.e(f"s_mov_b32 exec_hi, {s(X['sT2'])}")
        a.e(f"s_mul_i32 {s(X['sT'])}, {s(X['sC'])}, 160")
        a.e(f"buffer_store_dwordx4 v[24:27], v7, {s(X['SOUT'],4)}, {s(X['sT'])} offen")
        a.e("s_mov_b64 exec, -1")
    a.e("s_waitcnt vmcnt(0)")
    a.e("s_barrier")
    a.e(f"s_mov_b32 {s(X['sT4'])}, {s(X['sV'])}")
    task(X['sT4'])
    L = a.newlab("fa3")
    a.e(f"s_cmp_ge_u32 {s(X['sV'])}, 4")
    a.e(f"s_cbranch_scc1 {L}")
    a.nop(2)
    a.e(f"s_add_u32 {s(X['sT4'])}, {s(X['sV'])}, 8")
    task(X['sT4'])
    a.lab(L)
```

```python
from common import *
import common
from finala import finalA
import math
sW, sC, sM, sV, sT = 3, 4, 5, 6, 7
SX, SWQ, SWS, SDBG = 8, 12, 16, 20
sQB, sJ, sGH, sNT = 24, 25, 26, 27
sMX, sMW, sCX, sCW = 28, 29, 30, 31
sT2, sT3 = 32, 33
sPM = 34
sPC = 36
sChunk, sSlotN, sSlotD, sMKV, sKVoff = 37, 38, 39, 40, 41
sRetry = 42
sNonce = 43
SU, SOUT, sPD, sT4 = 48, 52, 46, 56
SWKV = 92
sWOF, sWLD = 57, 58
sEx = 44
vL = 0
vX0, vX1, vW0, vW1, vW2 = 2, 3, 4, 5, 6
vPF = 7
vXA = 8
vWA = 16
vWK = 17
vXG = 18
vO = 16
vS0, vS1 = 32, 48
vP = 64
vQ1, vQ2 = 72, 76
KV = [dict(K1=80, V1=84, V2=88, K2=92), dict(K1=94, V1=98, V2=102, K2=106)]
aK1c, aK1n, aK2c, aK2n, aVc, aVn = 108, 109, 110, 111, 112, 113
vDMA = 114
vN2 = 115
vT0, vT1, vT2, vT3 = 116, 117, 118, 119
vLK1, vLK2, vLV = 120, 121, 122
vZ = 123
vNC = 124
OPT = {}
QBUF = 36864
CHUNK = 24576
LDS_FLAGS = 81408
OROW = 176

def ids(a):
    a.e(f"s_and_b32 {s(sW)}, s2, 255")
    srd(a, SX, "x", 0); srd(a, SWQ, "wq", 0); srd(a, SWS, "ws", 0); srd(a, SDBG, "dbg", 0)
    srd(a, SU, "u", 0); srd(a, SOUT, "out", 0)
    a.e(f"s_load_dwordx2 {s(sPD,2)}, s[0:1], {KA['Dskip']}")
    a.e(f"v_lshrrev_b32 v1, 6, v0")
    a.e(f"s_and_b32 {s(sC)}, {s(sW)}, 7")
    a.e(f"s_lshr_b32 {s(sM)}, {s(sW)}, 3")
    a.e(f"v_readfirstlane_b32 {s(sV)}, v1")
    a.e(f"v_and_b32 v0, 63, v0")
    a.e(f"s_lshr_b32 {s(sT)}, {s(sM)}, 3")
    a.e(f"s_lshl_b32 {s(sT)}, {s(sT)}, 3")
    a.e(f"s_add_u32 {s(sQB)}, {s(sT)}, {s(sC)}")
    a.e(f"s_and_b32 {s(sJ)}, {s(sM)}, 7")
    a.e(f"s_lshr_b32 {s(sT)}, {s(sJ)}, 1")
    a.e(f"s_and_b32 {s(sT)}, {s(sT)}, 1")
    a.e(f"s_lshl_b32 {s(sT)}, {s(sT)}, 3")
    a.e(f"s_add_u32 {s(sT)}, {s(sT)}, {KA['wk']}")
    a.e(f"s_load_dwordx2 {s(SWKV,2)}, s[0:1], {s(sT)}")
    a.e(f"s_and_b32 {s(sGH)}, {s(sV)}, 3")
    a.e(f"s_lshr_b32 {s(sNT)}, {s(sV)}, 2")
    for r, sz in ((SX, XSIZE), (SWQ, WSIZE), (SWS, WS_SIZE), (SDBG, 256), (SU, XSIZE), (SOUT, OUTSIZE), (SWKV, WKVSIZE)):
        srd_fin(a, r, sz)

QSLOT = 18432; QW = 8192; WRING = 73728; WSLOT = 2560
class VM:
    def __init__(self, a): self.a = a; self.q = []
    def issue(self, tag, n=1): self.q += [tag] * n
    def wait(self, tags):
        last = max([i for i, t in enumerate(self.q) if t in tags], default=-1)
        n = len(self.q) - 1 - last
        self.a.e(f"s_waitcnt vmcnt({n})")
        self.q = self.q[last + 1:]

def q_main_dma(a, c):
    b = (c % 4) * QSLOT
    a.e(f"s_mov_b32 {s(sCX)}, {c*128}")
    a.e(f"s_mov_b32 {s(sCW)}, {c*64*1280}")
    a.e(f"s_add_u32 m0, {s(sMX)}, {b}")
    a.e("s_nop 0")
    a.e(f"buffer_load_dwordx4 {v(vX0)}, {s(SX,4)}, {s(sCX)} offen lds")
    a.e(f"s_add_u32 m0, {s(sMW)}, {b}")
    a.e("s_nop 0")
    a.e(f"buffer_load_dwordx4 {v(vW0)}, {s(SWQ,4)}, {s(sCW)} offen lds")
    a.e(f"s_add_u32 m0, {s(sMW)}, {b+1024}")
    a.e("s_mov_b64 exec, 0xffff")
    a.e(f"buffer_load_dwordx4 {v(vW1)}, {s(SWQ,4)}, {s(sCW)} offen lds")
    a.e("s_mov_b64 exec, -1")
def q_w_dma(a, c):
    a.e(f"s_add_u32 {s(sCX)}, {s(sWOF)}, {c*2560}")
    a.e(f"s_add_u32 m0, {s(sWLD)}, {(c % 3) * 640}")
    a.e("s_mov_b32 exec_hi, 0xff")
    a.e(f"buffer_load_dwordx4 {v(vW2)}, {s(SWKV,4)}, {s(sCX)} offen lds")
    a.e("s_mov_b32 exec_hi, -1")

def l2_warm(a):
    Lw = a.newlab("pfw"); L7 = a.newlab("pf7"); Ld = a.newlab("pfd")
    a.e(f"s_cmp_eq_u32 {s(sV)}, 0")
    a.e(f"s_cbranch_scc0 {Lw}")
    a.e(f"v_min_u32 v20, 47, v0")
    a.e(f"v_mul_u32_u24 v21, 10923, v20")
    a.e(f"v_lshrrev_b32 v21, 16, v21")
    a.e(f"v_mul_u32_u24 v22, 6, v21")
    a.e(f"v_sub_u32 v22, v20, v22")
    a.e(f"v_mul_u32_u24 v21, 1280, v21")
    a.e(f"v_lshl_add_u32 v21, v22, 7, v21")
    a.e(f"s_lshl_b32 {s(sT2)}, {s(sQB)}, 3")
    a.e(f"s_add_u32 {s(sT2)}, {s(sT2)}, {s(sJ)}")
    a.e(f"s_mul_i32 {s(sT2)}, {s(sT2)}, {8*1280}")
    a.e(f"s_add_u32 {s(sT2)}, {s(sT2)}, 512")
    a.e(f"buffer_load_dword {v(vPF)}, v21, {s(SX,4)}, {s(sT2)} offen")
    a.e(f"s_branch {Ld}")
    a.lab(Lw)
    a.e(f"s_cmp_ge_u32 {s(sV)}, 4")
    a.e(f"s_cbranch_scc1 {L7}")
    a.e(f"s_sub_u32 {s(sT)}, {s(sV)}, 1")
    a.e(f"s_lshl_b32 {s(sT)}, {s(sT)}, 6")
    a.e(f"v_add_u32 v20, {s(sT)}, v0")
    a.e(f"v_lshrrev_b32 v21, 1, v20")
    a.e(f"v_and_b32 v22, 1, v20")
    a.e(f"v_mul_u32_u24 v21, {4*1280}, v21")
    a.e(f"v_lshl_add_u32 v21, v22, 7, v21")
    a.e(f"s_lshr_b32 {s(sT2)}, {s(sQB)}, 3")
    a.e(f"s_add_u32 {s(sT2)}, {s(sT2)}, 256")
    a.e(f"s_mul_i32 {s(sT2)}, {s(sT2)}, 1280")
    a.e(f"s_mul_i32 {s(sT3)}, {s(sJ)}, 160")
    a.e(f"s_and_b32 {s(sT3)}, {s(sT3)}, 0xffffff80")
    a.e(f"s_add_u32 {s(sT2)}, {s(sT2)}, {s(sT3)}")
    a.e(f"buffer_load_dword {v(vPF)}, v21, {s(SWQ,4)}, {s(sT2)} offen")
    a.e(f"s_branch {Ld}")
    a.lab(L7)
    if OPT.get("kv", "B") == "B":
        a.e(f"v_mov_b32 v21, 0")
        a.e(f"buffer_load_dword {v(vPF)}, v21, {s(SWQ,4)}, 0 offen")
        a.lab(Ld)
        return
    a.e(f"s_lshr_b32 {s(sT)}, {s(sM)}, 2")
    a.e(f"s_lshl_b32 {s(sT)}, {s(sT)}, 1")
    a.e(f"s_and_b32 {s(sT2)}, {s(sM)}, 1")
    a.e(f"s_add_u32 {s(sT)}, {s(sT)}, {s(sT2)}")
    a.e(f"s_mul_i32 {s(sT)}, {s(sT)}, 9")
    a.e(f"s_add_u32 {s(sT)}, {s(sT)}, 60")
    a.e(f"v_min_u32 v20, 8, v0")
    a.e(f"v_add_u32 v20, {s(sT)}, v20")
    a.e(f"v_lshlrev_b32 v21, 7, v20")
    a.e(f"buffer_load_dword {v(vPF)}, v21, {s(SWKV,4)}, 0 offen")
    a.lab(Ld)

QACC2 = 64
def q_loop(a, mode):
    extra = mode != "n"
    vm = VM(a)
    FA = [48, 56]; FB = [52, 60]; FW = 80; FX = 84
    acc = vS0
    nfirst = int(OPT.get("nfirst", 4))
    for c in range(4):
        if c == nfirst: a.e("s_setprio 0")
        q_main_dma(a, c); vm.issue(("m", c), 3)
        if extra and c < 3:
            q_w_dma(a, c); vm.issue(("w", c), 1)
    if OPT.get("warm", "1") == "1":
        l2_warm(a); vm.issue("pf")
    if nfirst < 4: a.e(f"s_setprio {OPT.get('aprio2', 2)}")
    def reads(ks, c, st):
        b = (c % 4) * QSLOT
        a.e(f"ds_read_b64_tr_b16 {v(FA[st],2)}, {v(vWA)} offset:{b + ks*2560}")
        a.e(f"ds_read_b64_tr_b16 {v(FA[st]+2,2)}, {v(vWA)} offset:{b + ks*2560 + 640}")
        a.e(f"ds_read_b128 {v(FB[st],4)}, {v(vXA+ks)} offset:{b}")
    vm.wait([("m", 0)])
    a.e("s_barrier")
    if mode == "n": stamp(a, 1)
    reads(0, 0, 0)
    step = 0
    for c in range(10):
        if extra and c >= 1 and c + 2 < 10:
            q_w_dma(a, c + 2); vm.issue(("w", c + 2), 1)
        for ks in range(4):
            st = step % 2; step += 1
            if ks == 2 and c < 9:
                vm.wait([("m", c + 1)])
                a.e("s_barrier")
                if mode == "n" and c == 8: stamp(a, 14)
                if c >= 1 and c + 3 < 10:
                    q_main_dma(a, c + 3); vm.issue(("m", c + 3), 3)
                if c == 4:
                    nonce_issue(a, SDBG, vZ, vNC); vm.issue("nonce")
            if ks < 3:
                reads(ks + 1, c, 1 - st)
                a.e(f"s_waitcnt lgkmcnt(3)")
            elif c < 9:
                reads(0, c + 1, 1 - st)
                a.e(f"s_waitcnt lgkmcnt(3)")
            else:
                a.e("s_waitcnt lgkmcnt(0)")
            first = (c == 0 and ks == 0)
            a.e(f"v_mfma_f32_32x32x16_bf16 {v(acc,16)}, {v(FA[st],4)}, {v(FB[st],4)}, {'0' if first else v(acc,16)}")
            if extra and ks == 1:
                vm.wait([("w", c)])
                a.e(f"ds_read_b64_tr_b16 {v(FW,2)}, {v(vWK)} offset:{(c % 3) * 640}")
                a.e(f"ds_read_b64_tr_b16 {v(FW+2,2)}, {v(vWK)} offset:{(c % 3) * 640 + 160}")
                a.e(f"ds_read_b128 {v(FX,4)}, {v(vXG)} offset:{(c % 4) * QSLOT}")
            if extra and ks == 2:
                cin = "0" if c == 0 else v(QACC2, 16)
                if mode == "K":
                    a.e(f"v_mfma_f32_32x32x16_bf16 {v(QACC2,16)}, {v(FW,4)}, {v(FX,4)}, {cin}")
                else:
                    a.e(f"v_mfma_f32_32x32x16_bf16 {v(QACC2,16)}, {v(FX,4)}, {v(FW,4)}, {cin}")
    a.e("s_waitcnt vmcnt(0)")
    if extra:
        a.nop(12)
        a.e(f"v_lshlrev_b32 v20, 4, v0")
        a.e(f"s_lshl_b32 {s(sT)}, {s(sGH)}, 12")
        a.e(f"s_add_u32 {s(sT)}, {s(sT)}, {2*QSLOT}")
        a.e(f"v_add_u32 v20, {s(sT)}, v20")
        for q in range(4):
            a.e(f"ds_write_b128 v20, {v(QACC2+4*q,4)} offset:{1024*q}")
        a.e("s_waitcnt lgkmcnt(0)")
    a.e("s_barrier")

def kv_reduce(a, mode):
    nq = 3 if mode == "K" else 4
    B = 80
    a.e(f"v_lshlrev_b32 v20, 4, v0")
    a.e(f"v_add_u32 v20, {2*QSLOT}, v20")
    for half in range(2):
        for p in range(2):
            for q in range(nq):
                a.e(f"ds_read_b128 {v(B + (p*4+q)*4, 4)}, v20 offset:{(2*half+p)*4096 + 1024*q}")
        a.e("s_waitcnt lgkmcnt(0)")
        for r in range(4 * nq):
            if half == 0:
                a.e(f"v_add_f32 {v(QACC2+r)}, {v(B+r)}, {v(B+16+r)}")
            else:
                a.e(f"v_add_f32 {v(B+r)}, {v(B+r)}, {v(B+16+r)}")
                a.e(f"v_add_f32 {v(QACC2+r)}, {v(QACC2+r)}, {v(B+r)}")

def kv_publish(a, mode):
    S = QACC2
    stamp(a, 16)
    kv_reduce(a, mode)
    stamp(a, 11)
    a.e(f"s_lshl_b32 {s(sT2)}, {s(sQB)}, 1")
    a.e(f"s_add_u32 {s(sT2)}, {s(sT2)}, {s(sNT)}")
    a.e(f"s_mul_i32 {s(sT3)}, {s(sT2)}, 3072")
    if WS_KV: a.e(f"s_add_u32 {s(sT3)}, {s(sT3)}, {WS_KV}")
    D = 112 - 24
    if mode == "K":
        a.e("s_mov_b32 exec_lo, 0")
        for r in range(8, 12): a.e(f"v_mov_b32 {v(S+r)}, 0")
        a.e("s_mov_b32 exec_lo, -1")
        for i in range(6): a.e(f"v_cvt_pk_bf16_f32 {v(D+i)}, {v(S+2*i)}, {v(S+2*i+1)}")
        a.e(f"v_mul_f32 v20, {v(S)}, {v(S)}")
        for r in range(1, 12): a.e(f"v_fmac_f32 v20, {v(S+r)}, {v(S+r)}")
        a.e("s_mov_b32 exec_lo, 0")
        a.e(f"v_mov_b32 {v(D+4)}, 0x3f803f80")
        a.e("s_mov_b32 exec_lo, -1")
        a.e(f"v_lshlrev_b32 v21, 4, v0")
        a.e(f"buffer_store_dwordx4 {v(D,4)}, v21, {s(SWS,4)}, {s(sT3)} offen sc1")
        a.e(f"v_lshlrev_b32 v22, 3, v0")
        a.e(f"buffer_store_dwordx2 {v(D+4,2)}, v22, {s(SWS,4)}, {s(sT3)} offen offset:1024 sc1")
        a.e(f"v_mov_b32 v21, v20")
        a.nop(2)
        a.e(f"v_permlane32_swap_b32 v20, v21")
        a.nop(1)
        a.e(f"v_add_f32 v20, v20, v21")
        for d in ("row_shr:1", "row_shr:2", "row_shr:4", "row_shr:8", "row_bcast:15 row_mask:0xa", "row_bcast:31 row_mask:0xc"):
            a.nop(2)
            a.e(f"v_max_f32_dpp v20, v20, v20 {d}" + ("" if "row_mask" in d else " row_mask:0xf") + " bank_mask:0xf")
        a.nop(2)
        a.e(f"v_readlane_b32 {s(sT)}, v20, 63")
        a.e(f"s_lshl_b32 {s(sT3)}, {s(sT2)}, 2")
        a.e(f"s_add_u32 {s(sT3)}, {s(sT3)}, {MB_KMAX}")
        a.e(f"v_mov_b32 v21, 0")
        a.e(f"v_mov_b32 v20, {s(sT)}")
        a.e("s_mov_b64 exec, 1")
        a.e(f"buffer_store_dword v20, v21, {s(SWS,4)}, {s(sT3)} offen sc1")
        a.e("s_mov_b64 exec, -1")
    else:
        for i in range(8): a.e(f"v_cvt_pk_bf16_f32 {v(D+i)}, {v(S+2*i)}, {v(S+2*i+1)}")
        a.e(f"v_and_b32 v20, 31, v0")
        a.e("s_mov_b32 exec_lo, 0xfff00000")
        a.e("s_mov_b32 exec_hi, 0xfff00000")
        for i in range(8): a.e(f"v_mov_b32 {v(D+i)}, 0")
        a.e("s_mov_b32 exec_lo, 0x00100000")
        a.e("s_mov_b32 exec_hi, 0x00100000")
        for i in range(8): a.e(f"v_mov_b32 {v(D+i)}, 0x3f803f80")
        a.e("s_mov_b64 exec, -1")
        a.e(f"v_lshrrev_b32 v21, 5, v0")
        a.e(f"v_mul_u32_u24 v21, 24, v21")
        a.e(f"v_add_u32 v21, v21, v20")
        a.e(f"v_lshlrev_b32 v21, 4, v21")
        a.e("s_mov_b32 exec_lo, 0x00ffffff")
        a.e("s_mov_b32 exec_hi, 0x00ffffff")
        a.e(f"buffer_store_dwordx4 {v(D,4)}, v21, {s(SWS,4)}, {s(sT3)} offen offset:1536 sc1")
        a.e(f"buffer_store_dwordx4 {v(D+4,4)}, v21, {s(SWS,4)}, {s(sT3)} offen offset:2304 sc1")
        a.e("s_mov_b64 exec, -1")
    a.e("s_waitcnt vmcnt(0)")
    stamp(a, 12)
    nonce_get(a, SDBG, vZ, vNC, sNonce, sPC)
    a.e(f"s_lshl_b32 {s(sT3)}, {s(sT2)}, 3")
    a.e(f"s_add_u32 {s(sT3)}, {s(sT3)}, {MB_B1 + (4 if mode == 'V' else 0)}")
    flag_store(a, SWS, sT3, sNonce, 20, 21, lanes=32, lane_stride=512)
    stamp(a, 13)

def qproj(a):
    a.c("==== A: q projection (+ K/V projection on one wave of workgroups j<4) ====")
    a.e(f"v_lshrrev_b32 v20, 3, v0")
    a.e(f"v_mul_u32_u24 v23, 1280, v20")
    a.e(f"v_lshrrev_b32 v21, 4, v0")
    a.e(f"s_and_b32 {s(sT)}, {s(sV)}, 1")
    a.e(f"s_lshl_b32 {s(sT)}, {s(sT)}, 2")
    a.e(f"v_add_u32 v21, {s(sT)}, v21")
    a.e(f"v_xor_b32 v21, v21, v0")
    a.e(f"v_and_b32 v21, 7, v21")
    a.e(f"v_lshl_add_u32 v21, v21, 4, v23")
    a.e(f"s_lshl_b32 {s(sT2)}, {s(sQB)}, 3")
    a.e(f"s_add_u32 {s(sT2)}, {s(sT2)}, {s(sV)}")
    a.e(f"s_mul_i32 {s(sT2)}, {s(sT2)}, {8*1280}")
    a.e(f"v_add_u32 {v(vX0)}, {s(sT2)}, v21")
    a.e(f"s_mul_i32 {s(sT2)}, {s(sV)}, {8*1280}")
    a.e(f"s_mul_i32 {s(sT3)}, {s(sJ)}, 160")
    a.e(f"s_add_u32 {s(sT2)}, {s(sT2)}, {s(sT3)}")
    for i, r in enumerate((vW0, vW1)):
        if i == 0: a.e(f"v_mov_b32 v20, v0")
        else: a.e(f"v_add_u32 v20, 64, v0")
        a.e(f"v_mul_u32_u24 v21, 6554, v20")
        a.e(f"v_lshrrev_b32 v21, 16, v21")
        a.e(f"v_mul_u32_u24 v21, 1120, v21")
        a.e(f"v_lshl_add_u32 v21, v20, 4, v21")
        a.e(f"v_add_u32 {v(r)}, {s(sT2)}, v21")
    a.e(f"v_lshlrev_b32 {v(vW2)}, 4, v0")
    a.e(f"s_lshl_b32 {s(sMX)}, {s(sV)}, 10")
    a.e(f"s_mul_i32 {s(sMW)}, {s(sV)}, 1280")
    a.e(f"s_add_u32 {s(sMW)}, {s(sMW)}, {QW}")
    a.e(f"v_and_b32 v20, 31, v0")
    a.e(f"s_lshl_b32 {s(sT)}, {s(sNT)}, 5")
    a.e(f"v_add_u32 v20, {s(sT)}, v20")
    a.e(f"v_bfe_u32 v22, v20, 1, 3")
    a.e(f"v_lshlrev_b32 v20, 7, v20")
    a.e(f"v_lshrrev_b32 v21, 5, v0")
    a.e(f"v_xor_b32 v21, v21, v22")
    for k in range(4):
        a.e(f"v_xor_b32 v22, {2*k}, v21")
        a.e(f"v_lshl_add_u32 {v(vXA+k)}, v22, 4, v20")
    a.e(f"v_lshrrev_b32 v20, 5, v0")
    a.e(f"v_lshlrev_b32 v20, 3, v20")
    a.e(f"v_bfe_u32 v21, v0, 2, 2")
    a.e(f"v_add_u32 v20, v20, v21")
    a.e(f"v_bfe_u32 v21, v0, 4, 1")
    a.e(f"v_lshlrev_b32 v21, 5, v21")
    a.e(f"v_and_b32 v22, 3, v0")
    a.e(f"v_lshl_add_u32 v21, v22, 3, v21")
    a.e(f"v_mul_u32_u24 v22, 160, v20")
    a.e(f"v_add_u32 v22, v22, v21")
    a.e(f"s_mul_i32 {s(sT)}, {s(sGH)}, 40")
    a.e(f"s_add_u32 {s(sT)}, {s(sT)}, {QW}")
    a.e(f"v_add_u32 {v(vWA)}, {s(sT)}, v22")
    a.e(f"v_mul_u32_u24 v22, 40, v20")
    a.e(f"v_add_u32 v22, v22, v21")
    a.e(f"v_mov_b32 {v(vWK)}, v22")
    a.e("s_waitcnt lgkmcnt(0)")
    if OPT.get("tlb", "0") == "1":
        a.e(f"v_and_b32 v20, 1, v0")
        a.e(f"v_mul_u32_u24 v20, {0x847000 - 0x3f000}, v20")
        a.e(f"v_add_u32 v20, 0x3f000, v20")
        a.e(f"buffer_load_dword v126, v20, {s(SWS,4)}, 0 offen")
    stamp(a, 15)
    LK = a.newlab("qK"); LV = a.newlab("qV"); Ln = a.newlab("qN"); Ld = a.newlab("qD")
    if OPT.get("kv", "B") == "B":
        q_loop(a, "n")
    else:
      qproj_kv_variants(a, LK, LV, Ln, Ld)
    return qproj_epilogue(a)

def qproj_kv_variants(a, LK, LV, Ln, Ld):
    a.e(f"s_mul_i32 {s(sWOF)}, {s(sGH)}, 640")
    a.e(f"s_mul_i32 {s(sWLD)}, {s(sGH)}, 1920")
    a.e(f"s_add_u32 {s(sWLD)}, {s(sWLD)}, {WRING}")
    a.e(f"v_add_u32 {v(vWK)}, {s(sWLD)}, {v(vWK)}")
    for k in range(4):
        Lk = a.newlab("xg")
        a.e(f"s_cmp_lg_u32 {s(sGH)}, {k}")
        a.e(f"s_cbranch_scc1 {Lk}")
        a.e(f"v_mov_b32 {v(vXG)}, {v(vXA+k)}")
        a.lab(Lk)
    a.e(f"s_cmp_ge_u32 {s(sJ)}, 4")
    a.e(f"s_cbranch_scc1 {Ln}")
    a.e(f"s_and_b32 {s(sT)}, {s(sJ)}, 1")
    a.e(f"s_cmp_lg_u32 {s(sNT)}, {s(sT)}")
    a.e(f"s_cbranch_scc1 {Ln}")
    a.e(f"s_cmp_ge_u32 {s(sJ)}, 2")
    a.e(f"s_cbranch_scc1 {LV}")
    for mode in ("K", "V"):
        if mode == "V": a.lab(LV)
        q_loop(a, mode)
        a.e(f"s_cmp_lg_u32 {s(sGH)}, 0")
        a.e(f"s_cbranch_scc1 {Ld}")
        kv_publish(a, mode)
        a.e(f"s_branch {Ld}")
    a.lab(Ln)
    q_loop(a, "n")
    a.lab(Ld)

def qproj_epilogue(a):
    acc = vS0
    a.nop(12)
    cs = math.log2(math.e) / math.sqrt(20.0)
    a.e(f"s_mov_b32 {s(sT)}, {hexf(cs)}")
    for r in range(12):
        a.e(f"v_mul_f32 {v(acc+r)}, {s(sT)}, {v(acc+r)}")
    a.e("s_mov_b32 exec_lo, 0")
    for r in range(8, 12):
        a.e(f"v_mov_b32 {v(acc+r)}, 0")
    a.e("s_mov_b32 exec_lo, -1")
    a.e(f"v_mul_f32 {v(vN2)}, {v(acc)}, {v(acc)}")
    for r in range(1, 12):
        a.e(f"v_fmac_f32 {v(vN2)}, {v(acc+r)}, {v(acc+r)}")
    for i in range(4):
        a.e(f"v_cvt_pk_bf16_f32 {v(vQ1+i)}, {v(acc+2*i)}, {v(acc+2*i+1)}")
    for i in range(2):
        a.e(f"v_cvt_pk_bf16_f32 {v(vQ2+i)}, {v(acc+8+2*i)}, {v(acc+9+2*i)}")
    a.e(f"v_mov_b32 {v(vT0)}, {v(vN2)}")
    a.nop(2)
    a.e(f"v_permlane32_swap_b32 {v(vN2)}, {v(vT0)}")
    a.nop(1)
    a.e(f"v_add_f32 {v(vN2)}, {v(vN2)}, {v(vT0)}")

def kv_dma(a, chunk_sreg, slot_sreg):
    a.e(f"s_add_u32 m0, {s(slot_sreg)}, {s(sMKV)}")
    a.e("s_nop 0")
    for i in range(3):
        a.e(f"buffer_load_dwordx4 {v(vDMA)}, {s(SWS,4)}, {s(chunk_sreg)} offen offset:{i*1024} sc1 lds")

def wait_b1(a):
    a.c("==== A: wait for K/V ====")
    nonce_get(a, SDBG, vZ, vNC, sNonce, sPC)
    Ls = a.newlab("nopoll")
    a.e(f"s_cmp_lg_u32 {s(sV)}, 0")
    a.e(f"s_cbranch_scc1 {Ls}")
    a.e(f"s_and_b32 {s(sT)}, {s(sW)}, {B1_REP-1}")
    a.e(f"s_lshl_b32 {s(sT)}, {s(sT)}, 10")
    a.e(f"s_add_u32 {s(sT)}, {s(sT)}, {MB_B1}")
    a.e(f"v_lshlrev_b32 {v(vT0)}, 4, v0")
    a.e(f"v_add_u32 {v(vT0)}, {s(sT)}, {v(vT0)}")
    poll_flags(a, SWS, vT0, vS1, sNonce, (1 << 64) - 1, sPC, sPM, "b1", sleep=int(OPT.get("slp1", 4)), pair=4)
    a.lab(Ls)
    a.e("s_barrier")

def tile(a, jj, mode="main"):
    Sa = vS0 if jj % 2 == 0 else vS1
    Sb = vS1 if jj % 2 == 0 else vS0
    cur = KV[jj % 2]; nx = KV[(jj + 1) % 2]
    if OPT.get("prio") == "alt":
        pass
    def G(i0):
        for i in range(i0, i0 + 4):
            a.e(f"v_exp_f32 {v(Sa+i)}, {v(Sa+i)}")
        a.e(f"v_cvt_pk_bf16_f32 {v(vP+i0//2)}, {v(Sa+i0)}, {v(Sa+i0+1)}")
        a.e(f"v_cvt_pk_bf16_f32 {v(vP+i0//2+1)}, {v(Sa+i0+2)}, {v(Sa+i0+3)}")
    def addr(cn, nn, blk):
        return (cn, blk * 3072) if blk < 8 else (nn, (blk - 8) * 3072)
    if jj == 6:
        a.e("s_waitcnt vmcnt(0) lgkmcnt(0)")
        if OPT.get("nobar") != "1": a.e("s_barrier")
        Lsk = a.newlab("nodma")
        a.e(f"s_cmp_ge_u32 {s(sChunk)}, 6")
        a.e(f"s_cbranch_scc1 {Lsk}")
        a.e(f"s_add_u32 {s(sT)}, {s(sChunk)}, 2")
        a.e(f"s_mul_i32 {s(sT)}, {s(sT)}, {CHUNK}")
        kv_dma(a, sT, sSlotD)
        a.lab(Lsk)
    else:
        a.e("s_waitcnt lgkmcnt(0)")
    a.e(f"v_mfma_f32_32x32x16_bf16 {v(Sb,16)}, {v(cur['K1'],4)}, {v(vQ1,4)}, 0")
    r, o = addr(aK1c, aK1n, jj + 2)
    a.e(f"ds_read_b128 {v(nx['K1'],4)}, {v(r)} offset:{o}")
    r, o = addr(aK2c, aK2n, jj + 2)
    a.e(f"ds_read_b64 {v(nx['K2'],2)}, {v(r)} offset:{o}")
    G(0)
    a.e(f"v_mfma_f32_32x32x16_bf16 {v(vO,16)}, {v(cur['V2'],4)}, {v(vP+4,4)}, {v(vO,16)}")
    a.e(f"ds_read_b128 {v(nx['V2'],4)}, {v(aVc)} offset:{jj*3072 + 768}")
    r, o = addr(aVc, aVn, jj + 1)
    a.e(f"ds_read_b128 {v(nx['V1'],4)}, {v(r)} offset:{o}")
    G(4)
    a.e(f"v_mfma_f32_32x32x8_bf16 {v(Sb,16)}, {v(cur['K2'],2)}, {v(vQ2,2)}, {v(Sb,16)}")
    G(8)
    a.e(f"v_mfma_f32_32x32x16_bf16 {v(vO,16)}, {v(cur['V1'],4)}, {v(vP,4)}, {v(vO,16)}")
    G(12)

def attention(a, warm=True):
    a.c("==== A: attention ====")
    Lstart = a.newlab("attn_start")
    a.e(f"v_lshlrev_b32 {v(vLK1)}, 4, v0")
    a.e(f"v_lshlrev_b32 {v(vLK2)}, 3, v0")
    a.e(f"v_add_u32 {v(vLK2)}, 1024, {v(vLK2)}")
    a.e(f"v_and_b32 {v(vT0)}, 31, v0")
    a.e(f"v_min_u32 {v(vT0)}, 23, {v(vT0)}")
    a.e(f"v_lshrrev_b32 {v(vT1)}, 5, v0")
    a.e(f"v_mul_u32_u24 {v(vT1)}, 24, {v(vT1)}")
    a.e(f"v_add_u32 {v(vT0)}, {v(vT0)}, {v(vT1)}")
    a.e(f"v_lshlrev_b32 {v(vLV)}, 4, {v(vT0)}")
    a.e(f"v_add_u32 {v(vLV)}, 1536, {v(vLV)}")
    a.e(f"s_mul_i32 {s(sMKV)}, {s(sV)}, 3072")
    a.e(f"v_lshlrev_b32 {v(vDMA)}, 4, v0")
    a.e(f"v_add_u32 {v(vDMA)}, {s(sMKV)}, {v(vDMA)}")
    if WS_KV: a.e(f"v_add_u32 {v(vDMA)}, {WS_KV}, {v(vDMA)}")
    a.e(f"v_mov_b32 {v(vZ)}, 0")
    a.e(f"s_mov_b32 {s(sRetry)}, 0")
    a.e(f"v_lshlrev_b32 {v(vT3)}, 3, v0")
    a.e(f"s_mov_b32 {s(sT)}, {MB_KMAX}")
    a.e(f"buffer_load_dwordx2 {v(vT2,2)}, {v(vT3)}, {s(SWS,4)}, {s(sT)} offen sc1")
    a.lab(Lstart)
    a.e(f"s_mov_b32 {s(sT2)}, 0")
    a.e(f"s_mov_b32 {s(sT3)}, {CHUNK}")
    kv_dma(a, sT2, sT2)
    kv_dma(a, sT3, sT3)
    Lnom = a.newlab("nom")
    a.e(f"s_cmp_lg_u32 {s(sRetry)}, 0")
    a.e(f"s_cbranch_scc1 {Lnom}")
    a.e("s_waitcnt vmcnt(6)")
    a.e(f"v_max_f32 {v(vT3)}, {v(vT2)}, {v(vT3)}")
    a.nop(2)
    for d in ("row_shr:1", "row_shr:2", "row_shr:4", "row_shr:8", "row_bcast:15 row_mask:0xa", "row_bcast:31 row_mask:0xc"):
        a.e(f"v_max_f32_dpp {v(vT3)}, {v(vT3)}, {v(vT3)} {d}" + ("" if "row_mask" in d else " row_mask:0xf") + " bank_mask:0xf")
        a.nop(2)
    a.e(f"v_readlane_b32 {s(sT)}, {v(vT3)}, 63")
    a.nop(2)
    a.e(f"v_mul_f32 {v(vT0)}, {s(sT)}, {v(vN2)}")
    a.e(f"v_sqrt_f32 {v(vT0)}, {v(vT0)}")
    a.e(f"s_mov_b32 {s(sT)}, {hexf(1.02)}")
    a.nop(1)
    a.e(f"v_mul_f32 {v(vT0)}, {s(sT)}, {v(vT0)}")
    a.e(f"v_cvt_pk_bf16_f32 {v(vT1)}, -{v(vT0)}, 0")
    a.e("s_mov_b32 exec_lo, 0")
    a.e(f"v_mov_b32 {v(vQ2)}, {v(vT1)}")
    a.e("s_mov_b32 exec_lo, -1")
    a.lab(Lnom)
    for r in range(16):
        a.e(f"v_mov_b32 {v(vO+r)}, 0")
    for r in range(4, 8):
        a.e(f"v_mov_b32 {v(vP+r)}, 0")
    a.e(f"v_mov_b32 {v(aK1c)}, {v(vLK1)}")
    a.e(f"v_mov_b32 {v(aK2c)}, {v(vLK2)}")
    a.e(f"v_mov_b32 {v(aVc)}, {v(vLV)}")
    a.e(f"v_add_u32 {v(aK1n)}, {CHUNK}, {v(vLK1)}")
    a.e(f"v_add_u32 {v(aK2n)}, {CHUNK}, {v(vLK2)}")
    a.e(f"v_add_u32 {v(aVn)}, {CHUNK}, {v(vLV)}")
    a.e(f"s_mov_b32 {s(sChunk)}, 0")
    a.e(f"s_mov_b32 {s(sSlotD)}, {2*CHUNK}")
    a.e("s_waitcnt vmcnt(3)")
    a.e("s_barrier")
    stamp(a, 4)
    stamp(a, 9, True)
    a.e(f"ds_read_b128 {v(KV[1]['K1'],4)}, {v(aK1c)}")
    a.e(f"ds_read_b64 {v(KV[1]['K2'],2)}, {v(aK2c)}")
    a.e(f"ds_read_b128 {v(KV[0]['K1'],4)}, {v(aK1c)} offset:3072")
    a.e(f"ds_read_b64 {v(KV[0]['K2'],2)}, {v(aK2c)} offset:3072")
    a.e(f"ds_read_b128 {v(KV[0]['V2'],4)}, {v(aVc)} offset:768")
    a.e(f"ds_read_b128 {v(KV[0]['V1'],4)}, {v(aVc)}")
    a.e("s_waitcnt lgkmcnt(4)")
    a.e(f"v_mfma_f32_32x32x16_bf16 {v(vS0,16)}, {v(KV[1]['K1'],4)}, {v(vQ1,4)}, 0")
    a.e(f"v_mfma_f32_32x32x8_bf16 {v(vS0,16)}, {v(KV[1]['K2'],2)}, {v(vQ2,2)}, {v(vS0,16)}")
    a.nop(12)
    Lloop = a.newlab("chunk")
    if OPT.get("prio") == "hi":
        Lp = a.newlab("prio")
        a.e(f"s_cmp_lt_u32 {s(sV)}, 4")
        a.e(f"s_cbranch_scc1 {Lp}")
        a.e("s_setprio 1")
        a.lab(Lp)
    if OPT.get("prio") == "all": a.e("s_setprio 2")
    a.L.append(".p2align 6")
    a.lab(Lloop)
    for jj in range(8):
        tile(a, jj)
    a.e(f"v_mov_b32 {v(aK1c)}, {v(aK1n)}")
    a.e(f"v_mov_b32 {v(aK2c)}, {v(aK2n)}")
    a.e(f"v_mov_b32 {v(aVc)}, {v(aVn)}")
    a.e(f"v_add_u32 {v(aK1n)}, {s(sSlotD)}, {v(vLK1)}")
    a.e(f"v_add_u32 {v(aK2n)}, {s(sSlotD)}, {v(vLK2)}")
    a.e(f"v_add_u32 {v(aVn)}, {s(sSlotD)}, {v(vLV)}")
    a.e(f"s_add_u32 {s(sSlotD)}, {s(sSlotD)}, {CHUNK}")
    a.e(f"s_cmp_ge_u32 {s(sSlotD)}, {3*CHUNK}")
    a.e(f"s_cselect_b32 {s(sSlotD)}, 0, {s(sSlotD)}")
    a.e(f"s_add_u32 {s(sChunk)}, {s(sChunk)}, 1")
    a.e(f"s_cmp_lt_u32 {s(sChunk)}, 8")
    a.e(f"s_cbranch_scc1 {Lloop}")
    a.e("s_waitcnt lgkmcnt(0)")
    a.e(f"v_mfma_f32_32x32x16_bf16 {v(vO,16)}, {v(KV[0]['V2'],4)}, {v(vP+4,4)}, {v(vO,16)}")
    a.nop(12)
    a.e(f"v_mov_b32 {v(vT0)}, {v(vO+8)}")
    a.e(f"v_mov_b32 {v(vT1)}, {v(vO+8)}")
    a.nop(2)
    a.e(f"v_permlane32_swap_b32 {v(vT0)}, {v(vT1)}")
    a.nop(1)
    return Lstart

def safety_vote(a, Lstart):
    Lok = a.newlab("voteok")
    a.e(f"s_mov_b32 {s(sT)}, {hexf(2.0**-60)}")
    a.e(f"v_mov_b32 {v(vT2)}, {s(sT)}")
    a.e(f"v_cmp_nge_f32 vcc, {v(vT1)}, {v(vT2)}")
    a.nop(2)
    a.e(f"s_cmp_lg_u64 vcc, 0")
    a.e(f"s_cselect_b32 {s(sT)}, 1, 0")
    a.e(f"v_mov_b32 {v(vT2)}, {s(sT)}")
    a.e(f"s_lshl_b32 {s(sT2)}, {s(sV)}, 2")
    a.e(f"s_add_u32 {s(sT2)}, {s(sT2)}, {LDS_FLAGS}")
    a.e(f"v_mov_b32 {v(vT3)}, {s(sT2)}")
    a.e(f"ds_write_b32 {v(vT3)}, {v(vT2)}")
    a.e("s_waitcnt lgkmcnt(0)")
    a.e("s_barrier")
    a.e(f"v_and_b32 {v(vT3)}, 7, v0")
    a.e(f"v_lshlrev_b32 {v(vT3)}, 2, {v(vT3)}")
    a.e(f"v_add_u32 {v(vT3)}, {LDS_FLAGS}, {v(vT3)}")
    a.e(f"ds_read_b32 {v(vT2)}, {v(vT3)}")
    a.e("s_waitcnt lgkmcnt(0)")
    a.e(f"v_cmp_ne_u32 vcc, 0, {v(vT2)}")
    a.nop(2)
    a.e(f"s_cmp_eq_u64 vcc, 0")
    a.e(f"s_cbranch_scc1 {Lok}")
    a.e(f"s_cmp_lg_u32 {s(sRetry)}, 0")
    a.e(f"s_cbranch_scc1 {Lok}")
    maxpass(a, Lstart)
    a.lab(Lok)

def maxpass(a, Lstart):
    a.c("---- fallback: true max pass ----")
    a.e(f"s_mov_b32 {s(sRetry)}, 1")
    a.e("s_barrier")
    a.e("s_mov_b32 exec_lo, 0")
    a.e(f"v_mov_b32 {v(vQ2)}, 0")
    a.e("s_mov_b32 exec_lo, -1")
    a.e(f"v_mov_b32 {v(vT2)}, 0xff800000")
    a.e(f"s_mov_b32 {s(sChunk)}, 0")
    Lc = a.newlab("mp_chunk"); Lb = a.newlab("mp_blk")
    a.lab(Lc)
    a.e(f"s_mul_i32 {s(sT)}, {s(sChunk)}, {CHUNK}")
    a.e(f"s_mov_b32 {s(sT3)}, 0")
    kv_dma(a, sT, sT3)
    a.e("s_waitcnt vmcnt(0)")
    a.e("s_barrier")
    a.e(f"v_mov_b32 {v(aK1c)}, {v(vLK1)}")
    a.e(f"v_mov_b32 {v(aK2c)}, {v(vLK2)}")
    a.e(f"s_mov_b32 {s(sT2)}, 0")
    a.lab(Lb)
    a.e(f"ds_read_b128 {v(KV[0]['K1'],4)}, {v(aK1c)}")
    a.e(f"ds_read_b64 {v(KV[0]['K2'],2)}, {v(aK2c)}")
    a.e("s_waitcnt lgkmcnt(0)")
    a.e(f"v_mfma_f32_32x32x16_bf16 {v(vS0,16)}, {v(KV[0]['K1'],4)}, {v(vQ1,4)}, 0")
    a.e(f"v_mfma_f32_32x32x8_bf16 {v(vS0,16)}, {v(KV[0]['K2'],2)}, {v(vQ2,2)}, {v(vS0,16)}")
    a.nop(16)
    for r in range(0, 16, 2):
        a.e(f"v_max3_f32 {v(vT2)}, {v(vS0+r)}, {v(vS0+r+1)}, {v(vT2)}")
    a.e(f"v_add_u32 {v(aK1c)}, 3072, {v(aK1c)}")
    a.e(f"v_add_u32 {v(aK2c)}, 3072, {v(aK2c)}")
    a.e(f"s_add_u32 {s(sT2)}, {s(sT2)}, 1")
    a.e(f"s_cmp_lt_u32 {s(sT2)}, 8")
    a.e(f"s_cbranch_scc1 {Lb}")
    a.e("s_barrier")
    a.e(f"s_add_u32 {s(sChunk)}, {s(sChunk)}, 1")
    a.e(f"s_cmp_lt_u32 {s(sChunk)}, 8")
    a.e(f"s_cbranch_scc1 {Lc}")
    a.e(f"v_mov_b32 {v(vT3)}, {v(vT2)}")
    a.nop(2)
    a.e(f"v_permlane32_swap_b32 {v(vT2)}, {v(vT3)}")
    a.nop(1)
    a.e(f"v_max_f32 {v(vT2)}, {v(vT2)}, {v(vT3)}")
    a.e(f"v_cvt_pk_bf16_f32 {v(vT3)}, {v(vT2)}, 0")
    a.e(f"v_lshlrev_b32 {v(vT3)}, 16, {v(vT3)}")
    a.e(f"v_sub_f32 {v(vT2)}, {v(vT2)}, {v(vT3)}")
    a.e(f"v_cvt_pk_bf16_f32 {v(vT3)}, -{v(vT3)}, -{v(vT2)}")
    a.e("s_mov_b32 exec_lo, 0")
    a.e(f"v_mov_b32 {v(vQ2)}, {v(vT3)}")
    a.e("s_mov_b32 exec_lo, -1")
    a.e(f"s_branch {Lstart}")

def epilogue(a):
    a.c("==== A: normalise, publish o ====")
    a.e(f"v_rcp_f32 {v(vT1)}, {v(vT1)}")
    a.nop(1)
    for r in range(12):
        a.e(f"v_mul_f32 {v(vO+r)}, {v(vO+r)}, {v(vT1)}")
    for i in range(6):
        a.e(f"v_cvt_pk_bf16_f32 {v(vS0+i)}, {v(vO+2*i)}, {v(vO+2*i+1)}")
    a.e(f"v_and_b32 {v(vT0)}, 31, v0")
    a.e(f"s_lshl_b32 {s(sT)}, {s(sNT)}, 5")
    a.e(f"v_add_u32 {v(vT0)}, {s(sT)}, {v(vT0)}")
    a.e(f"v_mul_u32_u24 {v(vT0)}, {OROW}, {v(vT0)}")
    a.e(f"v_lshrrev_b32 {v(vT2)}, 5, v0")
    a.e(f"v_lshl_add_u32 {v(vT0)}, {v(vT2)}, 3, {v(vT0)}")
    a.e(f"s_mul_i32 {s(sT)}, {s(sGH)}, 40")
    a.e(f"v_add_u32 {v(vT0)}, {s(sT)}, {v(vT0)}")
    a.e(f"ds_write_b64 {v(vT0)}, {v(vS0,2)}")
    a.e(f"ds_write_b64 {v(vT0)}, {v(vS0+2,2)} offset:16")
    a.e("s_mov_b32 exec_hi, 0")
    a.e(f"ds_write_b64 {v(vT0)}, {v(vS0+4,2)} offset:32")
    a.e("s_mov_b32 exec_hi, -1")
    a.e("s_waitcnt lgkmcnt(0)")
    a.e("s_barrier")
    def piece(first):
        a.e(f"v_lshrrev_b32 {v(vT1)}, 6, {v(vT0)}")
        a.e(f"v_and_b32 {v(vT2)}, 63, {v(vT0)}")
        a.e(f"v_mul_u32_u24 {v(vT3)}, {OROW}, {v(vT2)}")
        a.e(f"v_lshl_add_u32 {v(vT3)}, {v(vT1)}, 4, {v(vT3)}")
        a.e(f"ds_read_b128 {v(vS1,4)}, {v(vT3)}")
        a.e(f"s_mul_i32 {s(sT)}, {s(sJ)}, 10")
        a.e(f"v_add_u32 {v(vT1)}, {s(sT)}, {v(vT1)}")
        a.e(f"v_lshlrev_b32 {v(vT1)}, 8, {v(vT1)}")
        a.e(f"v_lshrrev_b32 {v(vT3)}, 4, {v(vT2)}")
        a.e(f"v_mul_u32_u24 {v(vT3)}, 20480, {v(vT3)}")
        a.e(f"v_add_u32 {v(vT1)}, {v(vT1)}, {v(vT3)}")
        a.e(f"v_and_b32 {v(vT2)}, 15, {v(vT2)}")
        a.e(f"v_lshl_add_u32 {v(vT1)}, {v(vT2)}, 4, {v(vT1)}")
        a.e(f"s_mul_i32 {s(sT)}, {s(sQB)}, 81920")
        a.e(f"s_add_u32 {s(sT)}, {s(sT)}, {WS_O}")
        a.e("s_waitcnt lgkmcnt(0)")
        a.e(f"buffer_store_dwordx4 {v(vS1,4)}, {v(vT1)}, {s(SWS,4)}, {s(sT)} offen sc1")
    a.e(f"s_lshl_b32 {s(sT2)}, {s(sV)}, 6")
    a.e(f"v_add_u32 {v(vT0)}, {s(sT2)}, v0")
    piece(True)
    Ls = a.newlab("nop2")
    a.e(f"s_cmp_ge_u32 {s(sV)}, 2")
    a.e(f"s_cbranch_scc1 {Ls}")
    a.e(f"v_add_u32 {v(vT0)}, 512, {v(vT0)}")
    a.nop(2)
    piece(False)
    a.lab(Ls)
    a.e("s_waitcnt vmcnt(0)")
    a.e("s_barrier")
    stamp(a, 7)
    Le = a.newlab("noarr")
    a.e(f"s_cmp_lg_u32 {s(sV)}, 0")
    a.e(f"s_cbranch_scc1 {Le}")
    a.e(f"s_lshl_b32 {s(sT)}, {s(sQB)}, 9")
    a.e(f"s_lshl_b32 {s(sT2)}, {s(sJ)}, 2")
    a.e(f"s_add_u32 {s(sT)}, {s(sT)}, {s(sT2)}")
    a.e(f"s_add_u32 {s(sT)}, {s(sT)}, {MB_B2}")
    flag_store(a, SWS, sT, sNonce, vT0, vT1)
    a.lab(Le)

def emit_A(a):
    if OPT.get("aprio", "2") != "0": a.e(f"s_setprio {OPT.get('aprio','2')}")
    stamp(a, 0)
    ids(a)
    qproj(a)
    stamp(a, 2)
    wait_b1(a)
    stamp(a, 3)
    Ls = attention(a)
    stamp(a, 5)
    stamp(a, 10, True)
    safety_vote(a, Ls)
    stamp(a, 6)
    epilogue(a)
    stamp(a, 8)
    if OPT.get("fin", "1") == "1":
        finalA(a, dict(sT=sT, sT2=sT2, sT3=sT3, sT4=sT4, sC=sC, sM=sM, sV=sV, SWS=SWS, SU=SU, SOUT=SOUT, sPD=sPD,
                       sNonce=sNonce, sPC=sPC, sPM=sPM))
    stamp(a, 17)
    stamp_to_dbg(a, [15, 1, 2, 3, 4, 5, 8, 17], SDBG, sV, 300, 1, vT0, vT1)
    stamp_flush(a, 18, SWS, sV, vT0, vT1)
    a.e("s_endpgm")
```

```python
from common import *
import common, math
sW, sC, sM, sV, sT = 3, 4, 5, 6, 7
SU, SX, SWS, SDBG, SWK, SWV = 8, 12, 16, 20, 24, 28
sPAre, sPAim, sPBre, sPBim, sPCre, sPCim, sPldt, sPD = 32, 34, 36, 38, 40, 42, 44, 46
SWO, SOUT = 48, 52
sT2, sT3, sT4 = 56, 57, 58
sPM = 80
sPC = 82
sCH = 83
sE = 84
sQB, sJ = 85, 86
sUnit, sCS = 87, 88
sP5 = 89
sEx = 90
sNonce = 92
sKT = 93
sF0, sKS = 94, 95
vNZ, vNC = 125, 126
L_UT0 = 71680
L_CNT = 71664
KG_STRIDE = 17408; KG_Y = 8704; KG_ROW = 272
L_A0 = 53248; A0_STRIDE = 4352
CP_STRIDE = 4416; CH_STRIDE = 4 * CP_STRIDE
L_UTL = 53248; UTL_STRIDE = 7600; UTL_Z = 2480

def ids(a):
    a.e(f"s_mov_b32 {s(sW)}, s2")
    for r, n in ((SU, "u"), (SX, "x"), (SWS, "ws"), (SDBG, "dbg"), (SWO, "wo"), (SOUT, "out")):
        srd(a, r, n, 0)
    a.e(f"s_lshr_b32 {s(sT)}, {s(sW)}, 3")
    a.e(f"s_and_b32 {s(sT)}, {s(sT)}, 1")
    a.e(f"s_lshl_b32 {s(sT)}, {s(sT)}, 3")
    a.e(f"s_add_u32 {s(sT)}, {s(sT)}, {KA['wk']}")
    a.e(f"s_load_dwordx2 {s(SWK,2)}, s[0:1], {s(sT)}")
    for r, n in ((sPAre, "Are"), (sPAim, "Aim"), (sPBre, "Bre"), (sPBim, "Bim"), (sPCre, "Cre"), (sPCim, "Cim"), (sPldt, "ldt"), (sPD, "Dskip")):
        a.e(f"s_load_dwordx2 {s(r,2)}, s[0:1], {KA[n]}")
    a.e(f"v_lshrrev_b32 v1, 6, v0")
    a.e(f"s_and_b32 {s(sC)}, {s(sW)}, 7")
    a.e(f"s_lshr_b32 {s(sM)}, {s(sW)}, 3")
    a.e(f"v_readfirstlane_b32 {s(sV)}, v1")
    a.e(f"v_and_b32 v0, 63, v0")
    a.e(f"s_and_b32 {s(sE)}, {s(sM)}, 1")
    a.e(f"s_lshr_b32 {s(sT)}, {s(sM)}, 3")
    a.e(f"s_lshl_b32 {s(sT)}, {s(sT)}, 3")
    a.e(f"s_add_u32 {s(sQB)}, {s(sT)}, {s(sC)}")
    a.e(f"s_and_b32 {s(sJ)}, {s(sM)}, 7")
    a.e(f"s_lshr_b32 {s(sT)}, {s(sM)}, 1")
    a.e(f"s_mul_i32 {s(sT)}, {s(sT)}, 5")
    a.e(f"s_mul_i32 {s(sP5)}, {s(sC)}, 80")
    a.e(f"s_add_u32 {s(sP5)}, {s(sP5)}, {s(sT)}")
    for r, sz in ((SU, XSIZE), (SX, XSIZE), (SWS, WS_SIZE), (SDBG, 256), (SWK, WKVSIZE), (SWO, WSIZE), (SOUT, OUTSIZE)):
        srd_fin(a, r, sz)

def tile_dma_160(a, srdr, sbase, lds_base, vt0, vt1, nrows_total=64, sc1=False):
    def one(first):
        a.e(f"v_mul_u32_u24 {v(vt1)}, 6554, {v(vt0)}")
        a.e(f"v_lshrrev_b32 {v(vt1)}, 16, {v(vt1)}")
        a.e(f"v_mul_u32_u24 {v(vt1)}, 1120, {v(vt1)}")
        a.e(f"v_lshl_add_u32 {v(vt1)}, {v(vt0)}, 4, {v(vt1)}")
        a.e(f"buffer_load_dwordx4 {v(vt1)}, {s(srdr,4)}, {s(sbase)} offen {'sc1 ' if sc1 else ''}lds")
    a.e(f"s_lshl_b32 {s(sT)}, {s(sV)}, 6")
    a.e(f"v_add_u32 {v(vt0)}, {s(sT)}, v0")
    a.e(f"s_lshl_b32 {s(sT)}, {s(sV)}, 10")
    a.e(f"s_add_u32 m0, {s(sT)}, {lds_base}")
    one(True)
    L = a.newlab("td2")
    a.e(f"s_cmp_ge_u32 {s(sV)}, 2")
    a.e(f"s_cbranch_scc1 {L}")
    a.e(f"v_add_u32 {v(vt0)}, 512, {v(vt0)}")
    a.e(f"s_add_u32 m0, {s(sT)}, {lds_base + 8192}")
    one(False)
    a.lab(L)

def u_tile_load(a):
    a.c("==== B: start u tile DMA ====")
    a.e(f"s_mul_i32 {s(sT2)}, {s(sM)}, {64*1280}")
    a.e(f"s_mul_i32 {s(sT3)}, {s(sC)}, 160")
    a.e(f"s_add_u32 {s(sT2)}, {s(sT2)}, {s(sT3)}")
    for e in range(640): assert (e * 6554) >> 16 == e // 10
    tile_dma_160(a, SU, sT2, L_UT0, 2, 3)

def lds_arrive(a, ncount, vt0, vt1, flag_sreg, name):
    L = a.newlab("arr_" + name)
    a.e(f"v_mov_b32 {v(vt0)}, {L_CNT}")
    a.e(f"v_mov_b32 {v(vt1)}, 1")
    a.e("s_mov_b64 exec, 1")
    a.e(f"ds_add_rtn_u32 {v(vt1)}, {v(vt0)}, {v(vt1)}")
    a.e("s_waitcnt lgkmcnt(0)")
    a.e(f"v_readfirstlane_b32 {s(sT)}, {v(vt1)}")
    a.e("s_mov_b64 exec, -1")
    a.nop(2)
    a.e(f"s_cmp_lg_u32 {s(sT)}, {ncount-1}")
    a.e(f"s_cbranch_scc1 {L}")
    flag_store(a, SWS, flag_sreg, sNonce, vt0, vt1)
    a.lab(L)

def global_arrive(a, vt0, vt1, flag_sreg, lanes=1, stride=0):
    L = a.newlab("garr")
    a.e(f"s_cmp_lg_u32 {s(sV)}, 0")
    a.e(f"s_cbranch_scc1 {L}")
    flag_store(a, SWS, flag_sreg, sNonce, vt0, vt1, lanes, stride)
    a.lab(L)

def flag_off(a, dst, kind):
    base = MB_B0 if kind == "B0" else MB_B3
    a.e(f"s_lshl_b32 {s(dst)}, {s(sC)}, 10")
    a.e(f"s_lshl_b32 {s(sT)}, {s(sM)}, 2")
    a.e(f"s_add_u32 {s(dst)}, {s(dst)}, {s(sT)}")
    a.e(f"s_add_u32 {s(dst)}, {s(dst)}, {base}")

def wait_counter(a, kind, target, vt0, vt1):
    L = a.newlab("nopoll")
    a.e(f"s_cmp_lg_u32 {s(sV)}, 0")
    a.e(f"s_cbranch_scc1 {L}")
    if kind in ("B0", "B3"):
        a.e(f"s_lshl_b32 {s(sT2)}, {s(sC)}, 10")
        a.e(f"s_add_u32 {s(sT2)}, {s(sT2)}, {MB_B0 if kind == 'B0' else MB_B3}")
        n = 32
    else:
        a.e(f"s_lshl_b32 {s(sT2)}, {s(sQB)}, 9")
        a.e(f"s_add_u32 {s(sT2)}, {s(sT2)}, {MB_B2}")
        n = 8
    a.e(f"v_and_b32 {v(vt0)}, {n-1}, v0")
    a.e(f"v_lshlrev_b32 {v(vt0)}, 2, {v(vt0)}")
    a.e(f"v_add_u32 {v(vt0)}, {s(sT2)}, {v(vt0)}")
    poll_flags(a, SWS, vt0, vt1, sNonce, (1 << n) - 1, sPC, sPM, kind, sleep=4, slow=(16 if kind == "B2" else 0))
    a.lab(L)
    a.e("s_barrier")

def nonce_make(a):
    L = a.newlab("nomake")
    a.e(f"s_or_b32 {s(sT)}, {s(sW)}, {s(sV)}")
    a.e(f"s_cmp_lg_u32 {s(sT)}, 0")
    a.e(f"s_cbranch_scc1 {L}")
    a.e(f"v_mov_b32 v2, {MB_NONCE}")
    a.e(f"buffer_load_dword v3, v2, {s(SWS,4)}, 0 offen sc1")
    a.e(f"s_mov_b32 {s(sT)}, 0x9e3779b1")
    a.e("s_waitcnt vmcnt(0)")
    a.e(f"v_mul_lo_u32 v3, v3, {s(sT)}")
    a.e(f"v_add_u32 v3, 0x7f4a7c15, v3")
    a.e(f"v_or_b32 v3, 1, v3")
    a.e(f"v_mov_b32 v4, 0")
    a.e("s_mov_b64 exec, 1")
    a.e(f"buffer_store_dword v3, v4, {s(SDBG,4)}, 0 offen sc1")
    a.e(f"buffer_store_dword v3, v2, {s(SWS,4)}, 0 offen sc1")
    a.e("s_mov_b64 exec, -1")
    a.lab(L)

KV_P = 32768
def kv_loads(a):
    a.c("==== B: K/V projection loads ====")
    XF = 8
    a.e(f"s_mul_i32 {s(sT2)}, {s(sV)}, 96")
    a.e(f"s_lshl_b32 {s(sT3)}, {s(sV)}, 6")
    a.e(f"s_add_u32 {s(sT3)}, {s(sT3)}, 128")
    a.e(f"s_cmp_lt_u32 {s(sV)}, 4")
    a.e(f"s_cselect_b32 {s(sF0)}, {s(sT2)}, {s(sT3)}")
    a.e(f"v_and_b32 v2, 15, v0")
    a.e(f"v_mul_u32_u24 v2, 1280, v2")
    a.e(f"v_lshrrev_b32 v3, 4, v0")
    a.e(f"v_lshl_add_u32 v2, v3, 4, v2")
    a.e(f"s_lshl_b32 {s(sT2)}, {s(sQB)}, 2")
    a.e(f"s_lshr_b32 {s(sT3)}, {s(sJ)}, 1")
    a.e(f"s_add_u32 {s(sT2)}, {s(sT2)}, {s(sT3)}")
    a.e(f"s_mov_b32 {s(sKT)}, {s(sT2)}")
    a.e(f"s_mul_i32 {s(sT2)}, {s(sT2)}, {16*1280}")
    a.e(f"s_lshl_b32 {s(sT3)}, {s(sF0)}, 1")
    a.e(f"s_add_u32 {s(sT2)}, {s(sT2)}, {s(sT3)}")
    for ks in range(3):
        a.e(f"buffer_load_dwordx4 {v(XF+4*ks,4)}, v2, {s(SX,4)}, {s(sT2)} offen offset:{64*ks}")
    a.e(f"v_lshlrev_b32 v3, 4, v0")
    a.e(f"s_mul_i32 {s(sT3)}, {s(sF0)}, 40")
    a.e(f"s_lshl_b32 m0, {s(sV)}, 12")
    a.e("s_nop 0")
    for i in range(3):
        a.e(f"buffer_load_dwordx4 v3, {s(SWK,4)}, {s(sT3)} offen offset:{1024*i} lds")
    a.e("s_mov_b32 exec_hi, 0xffff")
    a.e(f"buffer_load_dwordx4 v3, {s(SWK,4)}, {s(sT3)} offen offset:3072 lds")
    a.e("s_mov_b32 exec_hi, -1")

def kvproj(a):
    a.c("==== B: K/V projection ====")
    XF = 8; WF = 24; acc = 48
    a.e(f"v_lshrrev_b32 v4, 4, v0")
    a.e(f"v_lshlrev_b32 v4, 3, v4")
    a.e(f"v_bfe_u32 v5, v0, 2, 2")
    a.e(f"v_add_u32 v4, v4, v5")
    a.e(f"v_mul_u32_u24 v4, 40, v4")
    a.e(f"v_and_b32 v5, 3, v0")
    a.e(f"v_lshl_add_u32 v4, v5, 3, v4")
    a.e(f"s_lshl_b32 {s(sT4)}, {s(sV)}, 12")
    a.e(f"v_add_u32 v4, {s(sT4)}, v4")
    a.e("s_waitcnt vmcnt(0)")
    stamp(a, 12)
    for ks in range(3):
        for mt in range(2):
            r = WF + 8 * ks + 4 * mt
            a.e(f"ds_read_b64_tr_b16 {v(r,2)}, v4 offset:{1280*ks + 32*mt}")
            a.e(f"ds_read_b64_tr_b16 {v(r+2,2)}, v4 offset:{1280*ks + 32*mt + 160}")
    LV = a.newlab("kvV"); Lw = a.newlab("kvW")
    a.e(f"s_and_b32 {s(sT)}, {s(sJ)}, 1")
    a.e(f"s_cmp_lg_u32 {s(sT)}, 0")
    a.e("s_waitcnt lgkmcnt(0)")
    a.e(f"s_cbranch_scc1 {LV}")
    for mode in ("K", "V"):
        if mode == "V": a.lab(LV)
        L3 = a.newlab("kv3")
        for ks in range(3):
            if ks == 2:
                a.e(f"s_cmp_ge_u32 {s(sV)}, 4")
                a.e(f"s_cbranch_scc1 {L3}")
            for mt in range(2):
                w = v(WF + 8*ks + 4*mt, 4); x = v(XF + 4*ks, 4); d = v(acc + 4*mt, 4)
                cin = "0" if ks == 0 else d
                a.e(f"v_mfma_f32_16x16x32_bf16 {d}, {w}, {x}, {cin}" if mode == "K" else f"v_mfma_f32_16x16x32_bf16 {d}, {x}, {w}, {cin}")
        a.lab(L3)
        if mode == "K": a.e(f"s_branch {Lw}")
    a.lab(Lw)
    a.e(f"v_lshlrev_b32 v5, 4, v0")
    a.e(f"s_lshl_b32 {s(sT)}, {s(sV)}, 11")
    a.e(f"s_add_u32 {s(sT)}, {s(sT)}, {KV_P}")
    a.e(f"v_add_u32 v6, {s(sT)}, v5")
    a.nop(8)
    a.e(f"ds_write_b128 v6, {v(acc,4)}")
    a.e(f"ds_write_b128 v6, {v(acc+4,4)} offset:1024")
    a.e("s_waitcnt lgkmcnt(0)")
    a.e("s_barrier")
    stamp(a, 13)
    Lo = a.newlab("kv_others"); Ld = a.newlab("kv_done")
    a.e(f"s_cmp_lg_u32 {s(sV)}, 0")
    a.e(f"s_cbranch_scc1 {Lo}")
    nonce_issue(a, SDBG, vNZ, vNC)
    B = 56
    for p in range(8):
        for mt in range(2):
            a.e(f"ds_read_b128 {v(B + 8*p + 4*mt, 4)}, v5 offset:{KV_P + 2048*p + 1024*mt}")
    a.e("s_waitcnt lgkmcnt(0)")
    a.e("s_barrier")
    for r in range(8):
        x = [B + 8*p + r for p in range(8)]
        for k in (0, 2, 4, 6): a.e(f"v_add_f32 {v(x[k])}, {v(x[k])}, {v(x[k+1])}")
        a.e(f"v_add_f32 {v(x[0])}, {v(x[0])}, {v(x[2])}")
        a.e(f"v_add_f32 {v(x[4])}, {v(x[4])}, {v(x[6])}")
        a.e(f"v_add_f32 {v(acc+r)}, {v(x[0])}, {v(x[4])}")
    a.e(f"s_lshr_b32 {s(sT2)}, {s(sKT)}, 1")
    a.e(f"s_mul_i32 {s(sT2)}, {s(sT2)}, 3072")
    if WS_KV: a.e(f"s_add_u32 {s(sT2)}, {s(sT2)}, {WS_KV}")
    a.e(f"s_and_b32 {s(sT3)}, {s(sKT)}, 1")
    a.e(f"v_and_b32 v2, 15, v0")
    a.e(f"v_lshrrev_b32 v3, 4, v0")
    a.e(f"v_and_b32 v6, 1, v3")
    a.e(f"v_lshrrev_b32 v7, 1, v3")
    for i in range(4): a.e(f"v_cvt_pk_bf16_f32 {v(24+i)}, {v(acc+2*i)}, {v(acc+2*i+1)}")
    LVs = a.newlab("kvVs"); Lf = a.newlab("kv_flag")
    a.e(f"s_and_b32 {s(sT)}, {s(sJ)}, 1")
    a.e(f"s_cmp_lg_u32 {s(sT)}, 0")
    a.e(f"s_cbranch_scc1 {LVs}")
    a.e(f"s_lshl_b32 {s(sT)}, {s(sT3)}, 4")
    a.e(f"v_add_u32 v2, {s(sT)}, v2")
    a.e(f"v_lshl_add_u32 v8, v6, 5, v2")
    a.e(f"v_lshlrev_b32 v8, 4, v8")
    a.e(f"v_lshl_add_u32 v8, v7, 3, v8")
    a.e(f"buffer_store_dwordx2 v[24:25], v8, {s(SWS,4)}, {s(sT2)} offen sc1")
    a.e(f"v_mul_f32 v9, {v(acc)}, {v(acc)}")
    for r in range(1, 4): a.e(f"v_fmac_f32 v9, {v(acc+r)}, {v(acc+r)}")
    a.e("s_mov_b64 exec, 0xffff")
    for r in range(4, 8): a.e(f"v_fmac_f32 v9, {v(acc+r)}, {v(acc+r)}")
    a.e("s_mov_b64 exec, -1")
    a.e("s_mov_b32 exec_lo, 0xffff0000")
    a.e("s_mov_b32 exec_hi, 0")
    a.e(f"v_mov_b32 v26, 0x3f803f80")
    a.e(f"v_mov_b32 v27, 0")
    a.e("s_mov_b64 exec, -1")
    a.e(f"v_lshl_add_u32 v8, v3, 5, v2")
    a.e(f"v_lshlrev_b32 v8, 3, v8")
    a.e("s_mov_b32 exec_hi, 0")
    a.e(f"buffer_store_dwordx2 v[26:27], v8, {s(SWS,4)}, {s(sT2)} offen offset:1024 sc1")
    a.e("s_mov_b32 exec_hi, -1")
    a.e(f"v_mov_b32 v10, v9")
    a.nop(2)
    a.e(f"v_permlane32_swap_b32 v9, v10")
    a.nop(1)
    a.e(f"v_add_f32 v9, v9, v10")
    a.e(f"v_mov_b32 v10, v9")
    a.nop(2)
    a.e(f"v_permlane16_swap_b32 v9, v10")
    a.nop(1)
    a.e(f"v_add_f32 v9, v9, v10")
    for d in ("row_shr:1", "row_shr:2", "row_shr:4", "row_shr:8"):
        a.nop(2)
        a.e(f"v_max_f32_dpp v9, v9, v9 {d} row_mask:0xf bank_mask:0xf")
    a.nop(2)
    a.e(f"v_readlane_b32 {s(sT)}, v9, 15")
    a.e(f"s_lshl_b32 {s(sT3)}, {s(sKT)}, 2")
    a.e(f"s_add_u32 {s(sT3)}, {s(sT3)}, {MB_KMAX}")
    a.e(f"v_mov_b32 v10, 0")
    a.e(f"v_mov_b32 v9, {s(sT)}")
    a.e("s_mov_b64 exec, 1")
    a.e(f"buffer_store_dword v9, v10, {s(SWS,4)}, {s(sT3)} offen sc1")
    a.e("s_mov_b64 exec, -1")
    a.e(f"s_branch {Lf}")
    a.lab(LVs)
    a.e(f"s_mul_i32 {s(sT)}, {s(sT3)}, 768")
    a.e(f"s_add_u32 {s(sT2)}, {s(sT2)}, {s(sT)}")
    a.e(f"v_mul_u32_u24 v8, 24, v6")
    a.e(f"v_add_u32 v8, v8, v2")
    a.e(f"v_lshlrev_b32 v8, 4, v8")
    a.e(f"v_lshl_add_u32 v8, v7, 3, v8")
    a.e(f"buffer_store_dwordx2 v[24:25], v8, {s(SWS,4)}, {s(sT2)} offen offset:1536 sc1")
    a.e("s_mov_b32 exec_lo, 0xfff0fff0")
    a.e("s_mov_b32 exec_hi, 0xfff0fff0")
    a.e(f"v_mov_b32 v26, 0")
    a.e(f"v_mov_b32 v27, 0")
    a.e("s_mov_b32 exec_lo, 0x00100010")
    a.e("s_mov_b32 exec_hi, 0x00100010")
    a.e(f"v_mov_b32 v26, 0x3f803f80")
    a.e(f"v_mov_b32 v27, 0x3f803f80")
    a.e("s_mov_b32 exec_lo, 0x00ff00ff")
    a.e("s_mov_b32 exec_hi, 0x00ff00ff")
    a.e(f"buffer_store_dwordx2 v[26:27], v8, {s(SWS,4)}, {s(sT2)} offen offset:{1536 + 256} sc1")
    a.e("s_mov_b64 exec, -1")
    a.lab(Lf)
    a.e("s_waitcnt vmcnt(0)")
    stamp(a, 15)
    nonce_get(a, SDBG, vNZ, vNC, sNonce, sPC)
    a.e(f"s_lshl_b32 {s(sT2)}, {s(sQB)}, 3")
    a.e(f"s_add_u32 {s(sT2)}, {s(sT2)}, {s(sJ)}")
    a.e(f"s_lshl_b32 {s(sT2)}, {s(sT2)}, 2")
    a.e(f"s_add_u32 {s(sT2)}, {s(sT2)}, {MB_B1}")
    flag_store(a, SWS, sT2, sNonce, 6, 7, lanes=B1_REP, lane_stride=1024)
    a.e(f"s_branch {Ld}")
    a.lab(Lo)
    a.e("s_barrier")
    a.lab(Ld)

def u_transpose(a):
    a.c("==== B: u tile -> u^T ====")
    a.e(f"s_sub_u32 {s(sT2)}, {s(sV)}, 4")
    a.e(f"s_cmp_eq_u32 {s(sV)}, 0")
    a.e(f"s_cselect_b32 {s(sT2)}, 4, {s(sT2)}")
    a.e(f"v_lshrrev_b32 v2, 1, v0")
    a.e(f"v_mul_u32_u24 v2, 1280, v2")
    a.e(f"v_and_b32 v3, 1, v0")
    a.e(f"v_lshl_add_u32 v2, v3, 4, v2")
    a.e(f"s_mul_i32 {s(sT3)}, {s(sM)}, {64*1280}")
    a.e(f"s_mul_i32 {s(sT4)}, {s(sC)}, 160")
    a.e(f"s_add_u32 {s(sT3)}, {s(sT3)}, {s(sT4)}")
    a.e(f"s_lshl_b32 {s(sT4)}, {s(sT2)}, 5")
    a.e(f"s_add_u32 {s(sT3)}, {s(sT3)}, {s(sT4)}")
    a.e(f"s_lshl_b32 {s(sT4)}, {s(sT2)}, 11")
    a.e(f"s_add_u32 m0, {s(sT4)}, {L_UT0}")
    a.e("s_nop 0")
    a.e(f"buffer_load_dwordx4 v2, {s(SU,4)}, {s(sT3)} offen lds")
    a.e(f"s_add_u32 m0, {s(sT4)}, {L_UT0 + 1024}")
    a.e(f"s_add_u32 {s(sT3)}, {s(sT3)}, {32*1280}")
    a.e(f"buffer_load_dwordx4 v2, {s(SU,4)}, {s(sT3)} offen lds")
    a.e(f"v_lshrrev_b32 v2, 4, v0")
    a.e(f"v_lshlrev_b32 v2, 3, v2")
    a.e(f"v_bfe_u32 v3, v0, 2, 2")
    a.e(f"v_add_u32 v2, v2, v3")
    a.e(f"v_lshlrev_b32 v2, 5, v2")
    a.e(f"v_and_b32 v3, 3, v0")
    a.e(f"v_lshl_add_u32 v2, v3, 3, v2")
    a.e(f"s_add_u32 {s(sT)}, {s(sT4)}, {L_UT0}")
    a.e(f"v_add_u32 v2, {s(sT)}, v2")
    a.e(f"v_and_b32 v3, 15, v0")
    a.e(f"v_lshlrev_b32 v3, 12, v3")
    a.e(f"v_lshrrev_b32 v4, 4, v0")
    a.e(f"v_lshl_add_u32 v3, v4, 4, v3")
    a.e(f"s_mul_i32 {s(sT)}, {s(sC)}, 80")
    a.e(f"s_lshl_b32 {s(sT2)}, {s(sT2)}, 4")
    a.e(f"s_add_u32 {s(sT)}, {s(sT)}, {s(sT2)}")
    a.e(f"s_lshl_b32 {s(sT)}, {s(sT)}, 12")
    a.e(f"s_lshl_b32 {s(sT2)}, {s(sM)}, 7")
    a.e(f"s_add_u32 {s(sT)}, {s(sT)}, {s(sT2)}")
    a.e(f"s_add_u32 {s(sT)}, {s(sT)}, {WS_UT}")
    a.e("s_waitcnt vmcnt(0)")
    for th in range(2):
        a.e(f"ds_read_b64_tr_b16 {v(8+4*th,2)}, v2 offset:{th*1024}")
        a.e(f"ds_read_b64_tr_b16 {v(10+4*th,2)}, v2 offset:{th*1024+128}")
    a.e("s_waitcnt lgkmcnt(2)")
    a.e(f"buffer_store_dwordx4 v[8:11], v3, {s(SWS,4)}, {s(sT)} offen sc1")
    a.e("s_waitcnt lgkmcnt(0)")
    a.e(f"buffer_store_dwordx4 v[12:15], v3, {s(SWS,4)}, {s(sT)} offen offset:64 sc1")
    a.e("s_waitcnt vmcnt(0)")
    flag_off(a, sT2, "B0")
    lds_arrive(a, 5, 2, 3, sT2, "b0")

XROWS = {}
def rowidx(h, r): return (r & 3) + 8 * (r >> 2) + 4 * h
for r, c_ in enumerate(list(range(8)) + [256, 258, 260, 262, 264]): XROWS[c_] = rowidx(0, r)
for r, c_ in enumerate([512, 516, 520, 768, 772, 776, 1024, 1032, 1280, 1288, 1536, 1544, 1792, 1800]): XROWS[c_] = rowidx(1, r)

def cmul(a, d, x, w, t):
    a.e(f"v_pk_mul_f32 {v(t,2)}, {v(x,2)}, {v(w,2)} op_sel:[1,1] op_sel_hi:[1,0]")
    a.e(f"v_pk_fma_f32 {v(d,2)}, {v(x,2)}, {v(w,2)}, {v(t,2)} op_sel:[0,0,0] op_sel_hi:[0,1,1] neg_lo:[0,0,1]")

def kgen_loads(a):
    a.c("==== B: K generation parameter loads (waves 0..2) ====")
    Lskip = a.newlab("kgl_skip")
    a.e(f"s_sub_u32 {s(sKS)}, {s(sV)}, 1")
    a.e(f"s_cmp_ge_u32 {s(sKS)}, 3")
    a.e(f"s_cbranch_scc1 {Lskip}")
    chan_of_slot(a, sCH, sKS)
    a.e(f"s_lshl_b32 {s(sT)}, {s(sCH)}, 8")
    a.e(f"v_lshlrev_b32 v2, 1, v0")
    a.e(f"v_add_u32 v2, {s(sT)}, v2")
    for hf in range(2):
        for i, p in enumerate((sPAre, sPAim, sPBre, sPBim, sPCre, sPCim)):
            a.e(f"global_load_ushort {v(PR+6*hf+i)}, v2, {s(p,2)} offset:{128*hf}")
    a.e(f"s_lshl_b32 {s(sT)}, {s(sCH)}, 1")
    a.e(f"v_mov_b32 v3, {s(sT)}")
    a.e(f"global_load_ushort {v(vDT)}, v3, {s(sPldt,2)}")
    a.lab(Lskip)

PR = 112
vDT = 124
def kgen(a):
    a.c("==== B: K generation (waves 0..2) ====")
    a.e(f"s_mul_i32 {s(sT2)}, {s(sKS)}, {KG_STRIDE}")
    a.e(f"v_lshlrev_b32 v4, 2, v0")
    a.e(f"v_add_u32 v4, {s(sT2)}, v4")
    a.e(f"v_and_b32 v5, 31, v0")
    a.e(f"v_mul_u32_u24 v5, {KG_ROW}, v5")
    a.e(f"v_lshrrev_b32 v6, 5, v0")
    a.e(f"v_lshl_add_u32 v5, v6, 4, v5")
    a.e(f"v_add_u32 v5, {s(sT2)}, v5")
    acc = 96
    L2E = math.log2(math.e)
    a.e(f"v_lshlrev_b32 v20, 16, {v(vDT)}")
    a.e(f"s_mov_b32 {s(sT)}, {hexf(L2E)}")
    a.e(f"v_mul_f32 v20, {s(sT)}, v20")
    a.e(f"v_exp_f32 v20, v20")
    a.nop(1)
    a.e(f"v_cvt_pk_bf16_f32 v20, v20, v20")
    a.e(f"v_lshlrev_b32 v20, 16, v20")
    Z1, Z2, Z4, Z8, Z256, W_, X, T, Y, ZC8, T2 = 24, 26, 28, 30, 32, 34, 36, 38, 40, 42, 44
    AR, BI = 22, 23
    XS = 46
    for hf in range(2):
        p = PR + 6 * hf
        for i in range(6): a.e(f"v_lshlrev_b32 {v(p+i)}, 16, {v(p+i)}")
        a.e(f"v_mul_f32 {v(AR)}, v20, {v(p)}")
        a.e(f"v_mul_f32 {v(BI)}, v20, {v(p+1)}")
        a.e(f"s_mov_b32 {s(sT)}, {hexf(L2E)}")
        a.e(f"v_mul_f32 {v(AR)}, {s(sT)}, {v(AR)}")
        a.e(f"v_mul_f32 {v(BI)}, {hexf(1.0/(2*math.pi))}, {v(BI)}")
        a.e(f"v_mul_f32 {v(p+2)}, v20, {v(p+2)}")
        a.e(f"v_mul_f32 {v(p+3)}, v20, {v(p+3)}")
        a.e(f"v_mul_f32 {v(T)}, {v(p+5)}, {v(p+3)}")
        a.e(f"v_fma_f32 {v(W_)}, {v(p+4)}, {v(p+2)}, -{v(T)}")
        a.e(f"v_mul_f32 {v(T)}, {v(p+5)}, {v(p+2)}")
        a.e(f"v_fma_f32 {v(W_+1)}, {v(p+4)}, {v(p+3)}, {v(T)}")
        for zr, l in ((Z1, 1.0), (Z256, 256.0)):
            if l == 256.0:
                a.e(f"v_mul_f32 {v(T)}, {hexf(l)}, {v(AR)}")
                a.e(f"v_mul_f32 {v(T+1)}, {hexf(l)}, {v(BI)}")
                a.e(f"v_exp_f32 {v(T)}, {v(T)}")
                a.e(f"v_fract_f32 {v(T+1)}, {v(T+1)}")
            else:
                a.e(f"v_exp_f32 {v(T)}, {v(AR)}")
                a.e(f"v_fract_f32 {v(T+1)}, {v(BI)}")
            a.e(f"v_cos_f32 {v(zr)}, {v(T+1)}")
            a.e(f"v_sin_f32 {v(zr+1)}, {v(T+1)}")
            a.nop(1)
            a.e(f"v_mul_f32 {v(zr)}, {v(zr)}, {v(T)}")
            a.e(f"v_mul_f32 {v(zr+1)}, {v(zr+1)}, {v(T)}")
        cmul(a, Z2, Z1, Z1, T)
        cmul(a, Z4, Z2, Z2, T)
        cmul(a, Z8, Z4, Z4, T)
        a.e(f"v_mov_b32 {v(ZC8)}, {v(Z8)}")
        a.e(f"v_xor_b32 {v(ZC8+1)}, 0x80000000, {v(Z8+1)}")
        xops = []
        def putX(reg, c_):
            return [f"v_cvt_pk_bf16_f32 {v(T2)}, {v(reg)}, {v(reg+1)}", f"ds_write_b32 v4, {v(T2)} offset:{XROWS[c_]*KG_ROW}"]
        def putY(reg, b):
            return [f"v_cvt_pk_bf16_f32 {v(T2+1)}, {v(reg)}, {v(reg+1)}", f"ds_write_b32 v4, {v(T2+1)} offset:{KG_Y + b*KG_ROW}"]
        def cm(d, x, w, t):
            return [f"v_pk_mul_f32 {v(t,2)}, {v(x,2)}, {v(w,2)} op_sel:[1,1] op_sel_hi:[1,0]",
                    f"v_pk_fma_f32 {v(d,2)}, {v(x,2)}, {v(w,2)}, {v(t,2)} op_sel:[0,0,0] op_sel_hi:[0,1,1] neg_lo:[0,0,1]"]
        XA, XB = X, XS
        xs = []
        xs.append(putX(W_, 0))
        prev = W_
        for c_ in range(1, 8):
            xs.append(cm(XA, prev, Z1, T) + putX(XA, c_)); prev = XA
        xs.append(cm(XB, W_, Z256, T) + putX(XB, 256))
        prev = XB
        for c_ in (258, 260, 262, 264):
            xs.append(cm(XA, prev, Z2, T) + putX(XA, c_)); prev = XA
        for base in (512, 768):
            xs.append(cm(XB, XB, Z256, T) + putX(XB, base))
            xs.append(cm(XA, XB, Z4, T) + putX(XA, base + 4))
            xs.append(cm(XA, XA, Z4, T) + putX(XA, base + 8))
        for base in (1024, 1280, 1536, 1792):
            xs.append(cm(XB, XB, Z256, T) + putX(XB, base))
            xs.append(cm(XA, XB, Z8, T) + putX(XA, base + 8))
        ys = []
        ys.append([f"v_mov_b32 {v(Y)}, 1.0", f"v_mov_b32 {v(Y+1)}, 0"] + putY(Y, 0))
        TY = T2 + 2 - 0
        for b in range(1, 32):
            ys.append(cm(Y, Y, ZC8, 50) + putY(Y, b))
        n = max(len(xs), len(ys))
        for i in range(n):
            xa = xs[i] if i < len(xs) else []
            ya = ys[i] if i < len(ys) else []
            m_ = max(len(xa), len(ya))
            for k in range(m_):
                if k < len(xa): a.e(xa[k])
                if k < len(ya): a.e(ya[k])
        a.e("s_waitcnt lgkmcnt(0)")
        stamp(a, 13 + hf)
        FA, FB = 52, 56
        for grp in range(2):
            for k in range(4):
                ks = 4 * grp + k
                a.e(f"ds_read_b128 {v(60+8*k,4)}, v5 offset:{32*ks}")
                a.e(f"ds_read_b128 {v(64+8*k,4)}, v5 offset:{KG_Y + 32*ks}")
            for k in range(4):
                a.e(f"s_waitcnt lgkmcnt({6-2*k})")
                cin = "0" if (hf == 0 and grp == 0 and k == 0) else v(acc, 16)
                a.e(f"v_mfma_f32_32x32x16_bf16 {v(acc,16)}, {v(60+8*k,4)}, {v(64+8*k,4)}, {cin}")
    a.nop(14)
    stamp(a, 15)
    a.e(f"s_mul_i32 {s(sT2)}, {s(sKS)}, {A0_STRIDE}")
    a.e(f"s_add_u32 {s(sT2)}, {s(sT2)}, {L_A0}")
    a.e(f"v_and_b32 v2, 31, v0")
    a.e(f"v_lshlrev_b32 v2, 4, v2")
    a.e(f"v_sub_u32 v2, {2040*2}, v2")
    a.e(f"v_add_u32 v2, {s(sT2)}, v2")
    a.e(f"v_lshlrev_b32 v3, 2, v0")
    a.e(f"v_add_u32 v3, {s(sT2)}, v3")
    a.e(f"v_mov_b32 v6, 0")
    a.e(f"ds_write_b32 v3, v6 offset:4096")
    D = 8
    def pk(d, lo, hi): a.e(f"v_cvt_pk_bf16_f32 {v(d)}, {v(acc+lo)}, {v(acc+hi)}")
    def wr(base):
        a.e(f"v_subrev_u32 v7, {2*base}, v2")
        a.e(f"ds_write_b128 v7, {v(D,4)}")
        a.nop(2)
    a.e("s_mov_b32 exec_hi, 0")
    pk(D, 7, 6); pk(D+1, 5, 4); pk(D+2, 3, 2); pk(D+3, 1, 0); wr(0)
    pk(D, 12, 11); pk(D+1, 10, 10); pk(D+2, 10, 9); pk(D+3, 8, 8); wr(256)
    a.e("s_mov_b32 exec_hi, -1")
    a.e("s_mov_b32 exec_lo, 0")
    for base, r0 in ((512, 0), (768, 3)):
        pk(D, r0+2, r0+2); pk(D+1, r0+1, r0+1); pk(D+2, r0+1, r0); pk(D+3, r0, r0); wr(base)
    a.e(f"s_mov_b32 {s(sPM)}, 0xaaaaaaaa")
    a.e(f"s_mov_b32 {s(sPM+1)}, 0xaaaaaaaa")
    for i, base in enumerate((1024, 1280, 1536, 1792)):
        g0, g8 = 6 + 2*i, 7 + 2*i
        a.e(f"v_cndmask_b32 v6, {v(acc+g0)}, {v(acc+g8)}, {s(sPM,2)}")
        pk(D, g8, g8)
        a.e(f"v_cvt_pk_bf16_f32 {v(D+1)}, {v(acc+g8)}, v6")
        pk(D+2, g0, g0); pk(D+3, g0, g0); wr(base)
    a.e("s_mov_b32 exec_lo, -1")
    a.e("s_waitcnt lgkmcnt(0)")

def expand(a):
    a.c("==== B: build the 4 shifted copies ====")
    def task(sreg):
        L = a.newlab("exp_skip")
        a.e(f"s_mul_i32 {s(sT2)}, {s(sreg)}, 13108")
        a.e(f"s_lshr_b32 {s(sT2)}, {s(sT2)}, 16")
        a.e(f"s_mul_i32 {s(sT3)}, {s(sT2)}, 5")
        a.e(f"s_sub_u32 {s(sT3)}, {s(sreg)}, {s(sT3)}")
        a.e(f"s_lshl_b32 {s(sT3)}, {s(sT3)}, 6")
        a.e(f"v_add_u32 v2, {s(sT3)}, v0")
        a.e(f"v_cmp_gt_u32 vcc, 264, v2")
        a.e(f"s_and_saveexec_b64 {s(sEx,2)}, vcc")
        a.e(f"v_lshlrev_b32 v2, 4, v2")
        a.e(f"s_mul_i32 {s(sT3)}, {s(sT2)}, {A0_STRIDE}")
        a.e(f"s_add_u32 {s(sT3)}, {s(sT3)}, {L_A0}")
        a.e(f"v_add_u32 v3, {s(sT3)}, v2")
        a.e(f"ds_read_b128 v[8:11], v3")
        a.e(f"ds_read_b64 v[12:13], v3 offset:16")
        a.e(f"s_mul_i32 {s(sT3)}, {s(sT2)}, {CH_STRIDE}")
        a.e(f"v_add_u32 v3, {s(sT3)}, v2")
        a.e("s_waitcnt lgkmcnt(0)")
        for k in range(5):
            a.e(f"v_alignbit_b32 {v(16+k)}, {v(9+k)}, {v(8+k)}, 16")
        a.e(f"ds_write_b128 v3, v[8:11]")
        a.e(f"ds_write_b128 v3, v[16:19] offset:{CP_STRIDE}")
        for k in range(4): a.e(f"v_mov_b32 {v(24+k)}, {v(9+k)}")
        for k in range(4): a.e(f"v_mov_b32 {v(28+k)}, {v(17+k)}")
        a.e(f"ds_write_b128 v3, v[24:27] offset:{2*CP_STRIDE}")
        a.e(f"ds_write_b128 v3, v[28:31] offset:{3*CP_STRIDE}")
        a.e(f"s_mov_b64 exec, {s(sEx,2)}")
    a.e(f"s_mov_b32 {s(sT4)}, {s(sV)}")
    task(sT4)
    L = a.newlab("exp2")
    a.e(f"s_cmp_ge_u32 {s(sV)}, 7")
    a.e(f"s_cbranch_scc1 {L}")
    a.nop(2)
    a.e(f"s_add_u32 {s(sT4)}, {s(sV)}, 8")
    task(sT4)
    a.lab(L)
    a.e("s_waitcnt lgkmcnt(0)")

def chan_of_slot(a, dst, slot_sreg):
    L1 = a.newlab("cs"); L2 = a.newlab("cs")
    a.e(f"s_cmp_eq_u32 {s(slot_sreg)}, 2")
    a.e(f"s_cbranch_scc1 {L1}")
    a.e(f"s_mul_i32 {s(dst)}, {s(sE)}, 3")
    a.e(f"s_add_u32 {s(dst)}, {s(dst)}, {s(sP5)}")
    a.e(f"s_add_u32 {s(dst)}, {s(dst)}, {s(slot_sreg)}")
    a.e(f"s_branch {L2}")
    a.lab(L1)
    a.e(f"s_add_u32 {s(dst)}, {s(sP5)}, 2")
    a.lab(L2)

def load_ut(a):
    a.c("==== B: u^T of own channels -> LDS (padded blocks of 80 B) ====")
    a.e(f"s_lshl_b32 {s(sT)}, {s(sV)}, 6")
    a.e(f"v_add_u32 v2, {s(sT)}, v0")
    a.e(f"v_mul_u32_u24 v3, 423, v2")
    a.e(f"v_lshrrev_b32 v3, 16, v3")
    for t_ in range(512): assert (t_ * 423) >> 16 == t_ // 155, t_
    a.e(f"v_mul_u32_u24 v4, {UTL_STRIDE - 155*16}, v3")
    a.e(f"v_lshl_add_u32 v4, v2, 4, v4")
    a.e(f"v_add_u32 v4, {L_UTL}, v4")
    for k in range(4): a.e(f"v_mov_b32 {v(8+k)}, 0")
    a.e(f"v_cmp_gt_u32 vcc, 465, v2")
    a.e(f"s_and_saveexec_b64 {s(sEx,2)}, vcc")
    a.e(f"ds_write_b128 v4, v[8:11]")
    a.e(f"s_mov_b64 exec, {s(sEx,2)}")
    def task(sreg):
        a.e(f"s_mul_i32 {s(sCS)}, {s(sreg)}, 13108")
        a.e(f"s_lshr_b32 {s(sCS)}, {s(sCS)}, 16")
        a.e(f"s_mul_i32 {s(sT3)}, {s(sCS)}, 5")
        a.e(f"s_sub_u32 {s(sT3)}, {s(sreg)}, {s(sT3)}")
        chan_of_slot(a, sCH, sCS)
        a.e(f"s_lshl_b32 {s(sT2)}, {s(sT3)}, 6")
        a.e(f"v_add_u32 v2, {s(sT2)}, v0")
        a.e(f"v_mul_u32_u24 v3, 13108, v2")
        a.e(f"v_lshrrev_b32 v3, 16, v3")
        a.e(f"v_mul_u32_u24 v4, 5, v3")
        a.e(f"v_sub_u32 v4, v2, v4")
        a.e(f"v_and_b32 v4, 3, v4")
        a.e(f"v_lshlrev_b32 v3, 6, v3")
        a.e(f"v_lshl_add_u32 v3, v4, 4, v3")
        a.e(f"s_lshl_b32 {s(sT2)}, {s(sCH)}, 12")
        a.e(f"s_add_u32 {s(sT2)}, {s(sT2)}, {WS_UT}")
        a.e(f"s_mul_i32 {s(sT)}, {s(sCS)}, {UTL_STRIDE}")
        a.e(f"s_lshl_b32 {s(sT3)}, {s(sT3)}, 10")
        a.e(f"s_add_u32 {s(sT)}, {s(sT)}, {s(sT3)}")
        a.e(f"s_add_u32 m0, {s(sT)}, {L_UTL + UTL_Z}")
        a.e("s_nop 0")
        a.e(f"buffer_load_dwordx4 v3, {s(SWS,4)}, {s(sT2)} offen sc1 lds")
    for e in range(320): assert (e * 13108) >> 16 == e // 5
    a.e(f"s_mov_b32 {s(sT4)}, {s(sV)}")
    task(sT4)
    L = a.newlab("ut2")
    a.e(f"s_cmp_ge_u32 {s(sV)}, 7")
    a.e(f"s_cbranch_scc1 {L}")
    a.e(f"s_add_u32 {s(sT4)}, {s(sV)}, 8")
    task(sT4)
    a.lab(L)
    a.e("s_waitcnt vmcnt(0) lgkmcnt(0)")
    a.e("s_barrier")

def conv(a):
    a.c("==== B: Toeplitz convolution on MFMA ====")
    L6 = a.newlab("cv6"); Ld = a.newlab("cvd"); Lidle = a.newlab("cv_idle")
    a.e(f"s_cmp_ge_u32 {s(sV)}, 6")
    a.e(f"s_cbranch_scc1 {L6}")
    a.e(f"s_cmp_ge_u32 {s(sV)}, 3")
    a.e(f"s_cselect_b32 {s(sCS)}, 1, 0")
    a.e(f"s_mul_i32 {s(sT)}, {s(sCS)}, 3")
    a.e(f"s_sub_u32 {s(sUnit)}, {s(sV)}, {s(sT)}")
    a.e(f"s_branch {Ld}")
    a.lab(L6)
    a.e(f"s_mov_b32 {s(sCS)}, 2")
    a.e(f"s_sub_u32 {s(sT)}, {s(sV)}, 5")
    a.e(f"s_cmp_eq_u32 {s(sV)}, 6")
    a.e(f"s_cselect_b32 {s(sT2)}, 0, 3")
    a.e(f"s_cmp_eq_u32 {s(sE)}, 0")
    a.e(f"s_cselect_b32 {s(sUnit)}, {s(sT)}, {s(sT2)}")
    a.lab(Ld)
    acc = 16
    a.e(f"s_cmp_eq_u32 {s(sUnit)}, 3")
    a.e(f"s_cbranch_scc1 {Lidle}")
    a.e(f"v_and_b32 v2, 31, v0")
    a.e(f"v_lshrrev_b32 v3, 5, v0")
    a.e(f"v_sub_u32 v4, 3, v2")
    a.e(f"v_and_b32 v4, 3, v4")
    a.e(f"s_cmp_eq_u32 {s(sUnit)}, 2")
    a.e(f"s_cselect_b32 {s(sT)}, 32, 0")
    a.e(f"s_add_u32 {s(sT)}, {s(sT)}, 31")
    a.e(f"s_lshl_b32 {s(sT)}, {s(sT)}, 5")
    a.e(f"s_sub_u32 {s(sT)}, 2047, {s(sT)}")
    a.e(f"v_sub_u32 v5, {s(sT)}, v2")
    a.e(f"v_lshl_add_u32 v5, v3, 3, v5")
    a.e(f"v_sub_u32 v5, v5, v4")
    a.e(f"v_lshlrev_b32 v5, 1, v5")
    a.e(f"v_mul_u32_u24 v4, {CP_STRIDE}, v4")
    a.e(f"v_add_u32 v5, v5, v4")
    a.e(f"s_mul_i32 {s(sT)}, {s(sCS)}, {CH_STRIDE}")
    a.e(f"v_add_u32 v5, {s(sT)}, v5")
    a.e(f"s_cmp_eq_u32 {s(sUnit)}, 1")
    a.e(f"s_cselect_b32 {s(sT)}, 32, 0")
    a.e(f"v_add_u32 v6, {s(sT)}, v2")
    a.e(f"v_mul_u32_u24 v6, 80, v6")
    a.e(f"v_lshl_add_u32 v6, v3, 4, v6")
    a.e(f"s_mul_i32 {s(sT)}, {s(sCS)}, {UTL_STRIDE}")
    a.e(f"s_add_u32 {s(sT)}, {s(sT)}, {L_UTL + UTL_Z - 80*31}")
    a.e(f"v_add_u32 v6, {s(sT)}, v6")
    steps = [(dp, ks) for dp in range(32) for ks in range(2)]
    NB = 4
    FA = [32 + 8*i for i in range(NB)]; FB = [36 + 8*i for i in range(NB)]
    def rd(n):
        dp, ks = steps[n]; st = n % NB
        oa = 2 * (32 * (31 - dp) + 16 * ks)
        a.e(f"ds_read_b64 {v(FA[st],2)}, v5 offset:{oa}")
        a.e(f"ds_read_b64 {v(FA[st]+2,2)}, v5 offset:{oa+8}")
        a.e(f"ds_read_b128 {v(FB[st],4)}, v6 offset:{80*(31-dp) + 32*ks}")
    for n in range(NB - 1): rd(n)
    for n in range(64):
        if n + NB - 1 < 64:
            rd(n + NB - 1)
            a.e(f"s_waitcnt lgkmcnt({3*(NB-1)})")
        else:
            a.e(f"s_waitcnt lgkmcnt({3*(63-n)})")
        st = n % NB
        cin = "0" if n == 0 else v(acc, 16)
        a.e(f"v_mfma_f32_32x32x16_bf16 {v(acc,16)}, {v(FA[st],4)}, {v(FB[st],4)}, {cin}")
    a.nop(14)
    a.lab(Lidle)
    a.e("s_barrier")
    PART = 0; STG = 16384
    Ln2 = a.newlab("cv_n2")
    a.e(f"v_lshlrev_b32 v2, 4, v0")
    a.e(f"s_lshl_b32 {s(sT)}, {s(sCS)}, 12")
    a.e(f"v_add_u32 v2, {s(sT)}, v2")
    a.e(f"s_cmp_lg_u32 {s(sUnit)}, 2")
    a.e(f"s_cbranch_scc1 {Ln2}")
    for q in range(4): a.e(f"ds_write_b128 v2, {v(acc+4*q,4)} offset:{PART + 1024*q}")
    a.e("s_waitcnt lgkmcnt(0)")
    a.lab(Ln2)
    a.e("s_barrier")
    Lfin = a.newlab("cv_fin"); Lno = a.newlab("cv_noadd")
    a.e(f"s_cmp_ge_u32 {s(sUnit)}, 2")
    a.e(f"s_cbranch_scc1 {Lfin}")
    a.e(f"s_cmp_eq_u32 {s(sUnit)}, 0")
    a.e(f"s_cbranch_scc1 {Lno}")
    for q in range(4): a.e(f"ds_read_b128 {v(32+4*q,4)}, v2 offset:{PART + 1024*q}")
    a.e("s_waitcnt lgkmcnt(0)")
    for r in range(16): a.e(f"v_add_f32 {v(acc+r)}, {v(acc+r)}, {v(32+r)}")
    a.lab(Lno)
    for i in range(8): a.e(f"v_cvt_pk_bf16_f32 {v(32+i)}, {v(acc+2*i)}, {v(acc+2*i+1)}")
    a.e(f"v_and_b32 v3, 31, v0")
    a.e(f"v_lshlrev_b32 v3, 6, v3")
    a.e(f"v_lshrrev_b32 v4, 5, v0")
    a.e(f"v_lshl_add_u32 v3, v4, 3, v3")
    a.e(f"s_lshl_b32 {s(sT)}, {s(sV)}, 11")
    a.e(f"s_add_u32 {s(sT)}, {s(sT)}, {STG}")
    a.e(f"v_add_u32 v3, {s(sT)}, v3")
    for g in range(4): a.e(f"ds_write_b64 v3, {v(32+2*g,2)} offset:{16*g}")
    a.e(f"v_lshlrev_b32 v4, 4, v0")
    a.e(f"v_add_u32 v5, {s(sT)}, v4")
    a.e("s_waitcnt lgkmcnt(0)")
    a.e(f"ds_read_b128 v[40:43], v5")
    a.e(f"ds_read_b128 v[44:47], v5 offset:1024")
    chan_of_slot(a, sCH, sCS)
    a.e(f"s_lshl_b32 {s(sT2)}, {s(sCH)}, 12")
    a.e(f"s_lshl_b32 {s(sT3)}, {s(sUnit)}, 11")
    a.e(f"s_add_u32 {s(sT2)}, {s(sT2)}, {s(sT3)}")
    a.e(f"s_add_u32 {s(sT2)}, {s(sT2)}, {WS_YT}")
    a.e("s_waitcnt lgkmcnt(1)")
    a.e(f"buffer_store_dwordx4 v[40:43], v4, {s(SWS,4)}, {s(sT2)} offen sc1")
    a.e("s_waitcnt lgkmcnt(0)")
    a.e(f"buffer_store_dwordx4 v[44:47], v4, {s(SWS,4)}, {s(sT2)} offen offset:1024 sc1")
    a.lab(Lfin)
    a.e("s_waitcnt vmcnt(0)")
    a.e("s_barrier")
    flag_off(a, sT2, "B3")
    global_arrive(a, 2, 3, sT2)

def outproj(a):
    a.c("==== B: output projection ====")
    AR = 96
    a.e("s_barrier")
    W = [2, 3, 4]
    a.e(f"s_mul_i32 {s(sT2)}, {s(sV)}, 20480")
    a.e(f"s_mul_i32 {s(sT3)}, {s(sJ)}, 160")
    a.e(f"s_add_u32 {s(sT2)}, {s(sT2)}, {s(sT3)}")
    for i, r in enumerate(W):
        a.e(f"v_add_u32 v20, {64*i}, v0")
        a.e(f"v_mul_u32_u24 v21, 6554, v20")
        a.e(f"v_lshrrev_b32 v21, 16, v21")
        a.e(f"v_mul_u32_u24 v21, 1120, v21")
        a.e(f"v_lshl_add_u32 v21, v20, 4, v21")
        a.e(f"v_add_u32 {v(r)}, {s(sT2)}, v21")
    def dma128(row0, ldsbase):
        a.e(f"s_mov_b32 {s(sT3)}, {row0*1280}")
        a.e(f"s_mul_i32 {s(sT4)}, {s(sV)}, 2560")
        a.e(f"s_add_u32 m0, {s(sT4)}, {ldsbase}")
        a.e("s_nop 0")
        a.e(f"buffer_load_dwordx4 {v(W[0])}, {s(SWO,4)}, {s(sT3)} offen lds")
        a.e(f"s_add_u32 m0, {s(sT4)}, {ldsbase+1024}")
        a.e("s_nop 0")
        a.e(f"buffer_load_dwordx4 {v(W[1])}, {s(SWO,4)}, {s(sT3)} offen lds")
        a.e(f"s_add_u32 m0, {s(sT4)}, {ldsbase+2048}")
        a.e("s_mov_b32 exec_hi, 0")
        a.e(f"buffer_load_dwordx4 {v(W[2])}, {s(SWO,4)}, {s(sT3)} offen lds")
        a.e("s_mov_b32 exec_hi, -1")
    dma128(512, 0)
    a.e(f"v_lshrrev_b32 v5, 4, v0")
    a.e(f"v_lshlrev_b32 v5, 3, v5")
    a.e(f"v_bfe_u32 v6, v0, 2, 2")
    a.e(f"v_add_u32 v5, v5, v6")
    a.e(f"v_mul_u32_u24 v5, 160, v5")
    a.e(f"v_and_b32 v6, 3, v0")
    a.e(f"v_lshl_add_u32 v5, v6, 3, v5")
    a.e(f"s_lshr_b32 {s(sCS)}, {s(sV)}, 1")
    a.e(f"s_and_b32 {s(sUnit)}, {s(sV)}, 1")
    a.e(f"s_mul_i32 {s(sT)}, {s(sCS)}, {32*160}")
    a.e(f"v_add_u32 v6, {s(sT)}, v5")
    a.e("s_waitcnt vmcnt(0)")
    a.e("s_barrier")
    for mt in range(5):
        a.e(f"ds_read_b64_tr_b16 {v(AR+4*mt,2)}, v6 offset:{32*mt}")
        a.e(f"ds_read_b64_tr_b16 {v(AR+4*mt+2,2)}, v6 offset:{32*mt+640}")
    a.e("s_waitcnt lgkmcnt(0)")
    a.e("s_barrier")
    for blk in range(4):
        dma128(128 * blk, 20480 * blk)
    a.e(f"s_mul_i32 {s(sT)}, {s(sCS)}, 20480")
    a.e(f"v_add_u32 v6, {s(sT)}, v5")
    a.e(f"v_lshlrev_b32 v7, 4, v0")
    a.e(f"s_mul_i32 {s(sT3)}, {s(sQB)}, 81920")
    a.e(f"s_mul_i32 {s(sT4)}, {s(sUnit)}, 40960")
    a.e(f"s_add_u32 {s(sT3)}, {s(sT3)}, {s(sT4)}")
    a.e(f"s_add_u32 {s(sT3)}, {s(sT3)}, {WS_O}")
    a.e(f"s_lshl_b32 {s(sT4)}, {s(sCS)}, 12")
    a.e(f"s_add_u32 {s(sCH)}, {s(sT3)}, {s(sT4)}")
    a.e(f"s_lshl_b32 {s(sT4)}, {s(sCS)}, 10")
    a.e(f"s_add_u32 {s(sP5)}, {s(sT3)}, {s(sT4)}")
    a.e(f"s_add_u32 {s(sP5)}, {s(sP5)}, {16*1024}")
    a.e("s_waitcnt vmcnt(0)")
    stamp(a, 9)
    a.e("s_setprio 3")
    wait_counter(a, "B2", 8, 2, 3)
    stamp(a, 10)
    BF = 8
    for k in range(4):
        for n2 in range(2):
            if n2 == 0:
                a.e(f"buffer_load_dwordx4 {v(BF+4*(2*k),4)}, v7, {s(SWS,4)}, {s(sCH)} offen offset:{1024*k} sc1")
            else:
                a.e(f"s_add_u32 {s(sT)}, {s(sCH)}, 20480")
                a.e(f"buffer_load_dwordx4 {v(BF+4*(2*k+1),4)}, v7, {s(SWS,4)}, {s(sT)} offen offset:{1024*k} sc1")
    a.e(f"buffer_load_dwordx4 {v(BF+32,4)}, v7, {s(SWS,4)}, {s(sP5)} offen sc1")
    a.e(f"s_add_u32 {s(sT)}, {s(sP5)}, 20480")
    a.e(f"buffer_load_dwordx4 {v(BF+36,4)}, v7, {s(SWS,4)}, {s(sT)} offen sc1")
    acc = 48
    FA = [88, 92]
    first = True
    seq = [(k, mt) for k in range(4) for mt in range(5)]
    def rdA(i):
        k, mt = seq[i]; st = i % 2
        a.e(f"ds_read_b64_tr_b16 {v(FA[st],2)}, v6 offset:{k*32*160 + 32*mt}")
        a.e(f"ds_read_b64_tr_b16 {v(FA[st]+2,2)}, v6 offset:{k*32*160 + 32*mt + 640}")
    rdA(0)
    for i, (k, mt) in enumerate(seq):
        if i + 1 < len(seq):
            rdA(i + 1)
            a.e("s_waitcnt lgkmcnt(2)")
        else:
            a.e("s_waitcnt lgkmcnt(0)")
        if mt == 0:
            a.e(f"s_waitcnt vmcnt({10 - 2*(k+1)})")
        st = i % 2
        for n2 in range(2):
            d = acc + 8*mt + 4*n2
            cin = "0" if k == 0 else v(d, 4)
            a.e(f"v_mfma_f32_16x16x32_bf16 {v(d,4)}, {v(FA[st],4)}, {v(BF+4*(2*k+n2),4)}, {cin}")
    a.e("s_waitcnt vmcnt(0)")
    for mt in range(5):
        for n2 in range(2):
            d = acc + 8*mt + 4*n2
            a.e(f"v_mfma_f32_16x16x32_bf16 {v(d,4)}, {v(AR+4*mt,4)}, {v(BF+32+4*n2,4)}, {v(d,4)}")
    a.nop(10)
    a.e("s_barrier")
    a.e(f"s_lshl_b32 {s(sT)}, {s(sUnit)}, 2")
    a.e(f"s_add_u32 {s(sT)}, {s(sT)}, {s(sCS)}")
    a.e(f"s_mul_i32 {s(sT)}, {s(sT)}, 10240")
    a.e(f"v_add_u32 v2, {s(sT)}, v7")
    for t_ in range(10):
        a.e(f"ds_write_b128 v2, {v(acc+4*t_,4)} offset:{1024*t_}")
    a.e("s_waitcnt lgkmcnt(0)")
    a.e("s_barrier")
    a.e(f"s_mul_i32 {s(sT)}, {s(sUnit)}, 40960")
    a.e(f"s_lshl_b32 {s(sT2)}, {s(sCS)}, 10")
    a.e(f"s_add_u32 {s(sT)}, {s(sT)}, {s(sT2)}")
    a.e(f"v_add_u32 v2, {s(sT)}, v7")
    a.e(f"v_and_b32 v3, 15, v0")
    a.e(f"s_lshl_b32 {s(sT)}, {s(sQB)}, 1")
    a.e(f"s_add_u32 {s(sT)}, {s(sT)}, {s(sUnit)}")
    a.e(f"s_lshl_b32 {s(sT)}, {s(sT)}, 5")
    a.e(f"v_add_u32 v3, {s(sT)}, v3")
    a.e(f"v_mul_u32_u24 v3, 2560, v3")
    a.e(f"v_lshrrev_b32 v4, 4, v0")
    a.e(f"v_lshl_add_u32 v3, v4, 3, v3")
    a.e(f"s_mul_i32 {s(sT3)}, {s(sJ)}, 160")
    a.e(f"s_add_u32 {s(sT3)}, {s(sT3)}, 1280")
    for i in range(3):
        Ls = a.newlab("op_t")
        if i == 2:
            a.e(f"s_cmp_ge_u32 {s(sCS)}, 2")
            a.e(f"s_cbranch_scc1 {Ls}")
        for p in range(4):
            a.e(f"ds_read_b128 {v(8+4*p,4)}, v2 offset:{p*10240 + 4096*i}")
        a.e(f"s_add_u32 {s(sT)}, {s(sCS)}, {4*i}")
        a.e(f"s_lshr_b32 {s(sT2)}, {s(sT)}, 1")
        a.e(f"s_lshl_b32 {s(sT2)}, {s(sT2)}, 5")
        a.e(f"s_and_b32 {s(sT)}, {s(sT)}, 1")
        a.e(f"s_mul_i32 {s(sT)}, {s(sT)}, {16*2560}")
        a.e(f"s_add_u32 {s(sT)}, {s(sT)}, {s(sT2)}")
        a.e(f"s_add_u32 {s(sT)}, {s(sT)}, {s(sT3)}")
        a.e("s_waitcnt lgkmcnt(0)")
        for r in range(4):
            a.e(f"v_add_f32 {v(8+r)}, {v(8+r)}, {v(12+r)}")
            a.e(f"v_add_f32 {v(16+r)}, {v(16+r)}, {v(20+r)}")
        for r in range(4):
            a.e(f"v_add_f32 {v(8+r)}, {v(8+r)}, {v(16+r)}")
        a.e(f"v_cvt_pk_bf16_f32 v24, v8, v9")
        a.e(f"v_cvt_pk_bf16_f32 v25, v10, v11")
        a.e(f"buffer_store_dwordx2 v[24:25], v3, {s(SOUT,4)}, {s(sT)} offen")
        a.nop(2)
        if i == 2: a.lab(Ls)

def emit_B(a, opts):
    a.e(f"s_setprio {opts.get('iprio', 3)}")
    stamp(a, 0)
    ids(a)
    a.e("s_waitcnt lgkmcnt(0)")
    kv_loads(a)
    if opts.get("plate", "0") == "0": kgen_loads(a)
    else: a.e(f"s_sub_u32 {s(sKS)}, {s(sV)}, 1")
    a.e(f"v_mov_b32 v2, {L_CNT}")
    a.e(f"v_mov_b32 v3, 0")
    a.e(f"ds_write_b32 v2, v3")
    a.e("s_waitcnt lgkmcnt(0)")
    a.e(f"s_setprio {opts.get('kprio', 3)}")
    nonce_make(a)
    kvproj(a)
    stamp(a, 1)
    Lj = a.newlab("role_join"); Lk = a.newlab("role_kg")
    a.e(f"s_cmp_lt_u32 {s(sKS)}, 3")
    a.e(f"s_cbranch_scc1 {Lk}")
    a.e(f"s_setprio {opts.get('uprio', 3)}")
    nonce_issue(a, SDBG, vNZ, vNC)
    a.e("s_waitcnt vmcnt(0)")
    nonce_get(a, SDBG, vNZ, vNC, sNonce, sPC)
    u_transpose(a)
    a.e(f"s_branch {Lj}")
    a.lab(Lk)
    a.e(f"s_setprio {opts.get('bprio', 3)}")
    if opts.get("plate", "0") == "1":
        kgen_loads(a)
        a.e("s_waitcnt vmcnt(0)")
    nonce_issue(a, SDBG, vNZ, vNC)
    stamp(a, 16)
    kgen(a)
    a.e("s_waitcnt vmcnt(0)")
    nonce_get(a, SDBG, vNZ, vNC, sNonce, sPC)
    stamp(a, 17)
    a.lab(Lj)
    a.e("s_barrier")
    stamp(a, 2)
    expand(a)
    a.e(f"s_setprio {opts.get('cprio', 0)}")
    stamp(a, 3)
    wait_counter(a, "B0", 32, 2, 3)
    stamp(a, 4)
    load_ut(a)
    stamp(a, 5)
    conv(a)
    stamp(a, 6)
    outproj(a)
    stamp(a, 11)
    stamp_to_dbg(a, [12, 1, 2, 6, 9, 10, 11], SDBG, sV, 44, 9, 2, 3)
    stamp_flush(a, 18, SWS, sV, 2, 3)
```

```python
from asmlib import *
KNAME = "concat_heads__ssm_conv_s4__grouped_kv_mqa__prompt"
KA = dict(u=0, Are=8, Aim=16, Bre=24, Bim=32, Cre=40, Cim=48, ldt=56, Dskip=64, x=72, wq=80, wk=88, wv=96,
          wo=104, out=112, dbg=120, ws=128)
WS_KV = 0
WS_UT = 0x40000
WS_YT = 0x2C0000
WS_O  = 0x540000
WS_SIZE = 0x848000
XSIZE = 2048 * 640 * 2
WSIZE = 640 * 640 * 2
WKVSIZE = 640 * 20 * 2
PSIZE = 640 * 128 * 2
OUTSIZE = 2048 * 1280 * 2
SRD3 = 0x20000
LDS_BYTES = 81920
SPIN_MAX = 20000
WS_MB = 0x30000
MB_NONCE = WS_MB
MB_B0 = WS_MB + 0x1000
MB_B3 = WS_MB + 0x3000
MB_B1 = 0x840000
B1_REP = 8
MB_KMAX = WS_MB + 0x7800
MB_B2 = WS_MB + 0x8000
KMAX_OFF = 1536 + 22*16
def DBG_B1(sh): return 64 * sh
DBG_KMAX = 4
def f32bits(x):
    import struct
    return struct.unpack("<I", struct.pack("<f", x))[0]
def hexf(x): return "0x%08x" % f32bits(x)

def srd(a, sreg, ka_name, size):
    a.e(f"s_load_dwordx2 {s(sreg,2)}, s[0:1], {KA[ka_name]}")
def srd_fin(a, sreg, size):
    a.e(f"s_mov_b32 {s(sreg+2)}, {size}")
    a.e(f"s_mov_b32 {s(sreg+3)}, 0x20000")

def poll_flags(a, ws_srd, vaddr, vtmp, snonce, lanes_mask, scnt, smask, name, sleep=4, slow=0, pair=False):
    L = a.newlab("poll_" + name); Lo = a.newlab("pollout_" + name); Lf = a.newlab("pollfast_" + name)
    a.e(f"s_mov_b32 {s(scnt)}, 0")
    a.lab(L)
    if pair == 4:
        a.e(f"buffer_load_dwordx4 {v(vtmp,4)}, {v(vaddr)}, {s(ws_srd,4)}, 0 offen sc1")
    elif pair:
        a.e(f"buffer_load_dwordx2 {v(vtmp,2)}, {v(vaddr)}, {s(ws_srd,4)}, 0 offen sc1")
    else:
        a.e(f"buffer_load_dword {v(vtmp)}, {v(vaddr)}, {s(ws_srd,4)}, 0 offen sc1")
    a.e(f"s_add_u32 {s(scnt)}, {s(scnt)}, 1")
    a.e("s_waitcnt vmcnt(0)")
    if pair == 4:
        for k in range(4): a.e(f"v_xor_b32 {v(vtmp+k)}, {s(snonce)}, {v(vtmp+k)}")
        a.e(f"v_or_b32 {v(vtmp)}, {v(vtmp)}, {v(vtmp+1)}")
        a.e(f"v_or_b32 {v(vtmp+2)}, {v(vtmp+2)}, {v(vtmp+3)}")
        a.e(f"v_or_b32 {v(vtmp)}, {v(vtmp)}, {v(vtmp+2)}")
        a.e(f"v_cmp_ne_u32 {s(smask,2)}, 0, {v(vtmp)}")
        a.nop(2)
    else:
        if pair:
            a.e(f"v_cmp_ne_u32 vcc, {s(snonce)}, {v(vtmp+1)}")
        a.e(f"v_cmp_ne_u32 {s(smask,2)}, {s(snonce)}, {v(vtmp)}")
        a.nop(2)
        if pair:
            a.e(f"s_or_b64 {s(smask,2)}, {s(smask,2)}, vcc")
    full = (1 << 64) - 1
    if lanes_mask != full:
        lo, hi = lanes_mask & 0xffffffff, lanes_mask >> 32
        a.e(f"s_and_b32 {s(smask)}, {s(smask)}, {hex(lo)}")
        a.e(f"s_and_b32 {s(smask+1)}, {s(smask+1)}, {hex(hi)}")
    a.e(f"s_cmp_eq_u64 {s(smask,2)}, 0")
    a.e(f"s_cbranch_scc1 {Lo}")
    a.e(f"s_cmp_gt_u32 {s(scnt)}, {SPIN_MAX}")
    a.e(f"s_cbranch_scc1 {Lo}")
    if slow:
        a.e(f"s_bcnt1_i32_b64 {s(smask)}, {s(smask,2)}")
        a.e(f"s_cmp_lt_u32 {s(smask)}, {bin(lanes_mask).count('1')}")
        a.e(f"s_cbranch_scc1 {Lf}")
        a.e(f"s_sleep {slow}")
        a.e(f"s_branch {L}")
        a.lab(Lf)
    if sleep: a.e(f"s_sleep {sleep}")
    a.e(f"s_branch {L}")
    a.lab(Lo)

def nonce_issue(a, dbg_srd, vz, vn):
    a.e(f"v_mov_b32 {v(vz)}, 0")
    a.e(f"buffer_load_dword {v(vn)}, {v(vz)}, {s(dbg_srd,4)}, 0 offen sc1")
def nonce_get(a, dbg_srd, vz, vn, snonce, scnt):
    L = a.newlab("nonce"); Lo = a.newlab("nonce_ok")
    a.e(f"s_mov_b32 {s(scnt)}, 0")
    a.lab(L)
    a.e(f"v_readfirstlane_b32 {s(snonce)}, {v(vn)}")
    a.nop(2)
    a.e(f"s_cmp_lg_u32 {s(snonce)}, 0")
    a.e(f"s_cbranch_scc1 {Lo}")
    a.e(f"s_add_u32 {s(scnt)}, {s(scnt)}, 1")
    a.e(f"s_cmp_gt_u32 {s(scnt)}, {SPIN_MAX}")
    a.e(f"s_cbranch_scc1 {Lo}")
    a.e("s_sleep 4")
    a.e(f"v_mov_b32 {v(vz)}, 0")
    a.e(f"buffer_load_dword {v(vn)}, {v(vz)}, {s(dbg_srd,4)}, 0 offen sc1")
    a.e("s_waitcnt vmcnt(0)")
    a.e(f"s_branch {L}")
    a.lab(Lo)
def flag_store(a, ws_srd, soff, snonce, vt0, vt1, lanes=1, lane_stride=0):
    if lanes == 1:
        a.e(f"v_mov_b32 {v(vt0)}, 0")
    else:
        a.e(f"v_mul_u32_u24 {v(vt0)}, {lane_stride}, v0")
    a.e(f"v_mov_b32 {v(vt1)}, {s(snonce)}")
    a.e(f"s_mov_b64 exec, {hex((1 << lanes) - 1)}")
    a.e(f"buffer_store_dword {v(vt1)}, {v(vt0)}, {s(ws_srd,4)}, {s(soff)} offen sc1")
    a.e("s_mov_b64 exec, -1")

def code_prefetch(a, kstart, kend_label, vt0, vt1, stmp):
    L = a.newlab("pc")
    a.e(f"s_getpc_b64 {s(stmp,2)}")
    a.lab(L)
    a.e(f"s_sub_u32 {s(stmp)}, {s(stmp)}, {L}-{kstart}")
    a.e(f"s_subb_u32 {s(stmp+1)}, {s(stmp+1)}, 0")
    a.e(f"s_lshr_b32 {s(stmp+2)}, s2, 3")
    a.e(f"s_lshl_b32 {s(stmp+2)}, {s(stmp+2)}, 9")
    a.e(f"v_and_b32 {v(vt0)}, 7, v0")
    a.e(f"v_lshlrev_b32 {v(vt0)}, 6, {v(vt0)}")
    a.e(f"v_add_u32 {v(vt0)}, {s(stmp+2)}, {v(vt0)}")
    a.e(f"v_min_u32 {v(vt0)}, {kend_label}-{kstart}-4, {v(vt0)}")
    a.e(f"global_load_dword {v(vt1)}, {v(vt0)}, {s(stmp,2)}")

PROF = False
WS_PROF = 0x7C0000
PROF_S0 = 60
def stamp(a, i, cyc=False):
    import common
    if not common.PROF: return
    a.e(f"{'s_memtime' if cyc else 's_memrealtime'} s[98:99]")
    a.e("s_waitcnt lgkmcnt(0)")
    a.e(f"s_mov_b32 {s(PROF_S0+i)}, s98")
def stamp_flush(a, n, ws_srd, swave, vt0, vt1):
    import common
    if not common.PROF: return
    a.e(f"s_lshl_b32 s59, s2, 3")
    a.e(f"s_add_u32 s59, s59, {s(swave)}")
    a.e(f"s_lshl_b32 s59, s59, 7")
    a.e(f"s_add_u32 s59, s59, {WS_PROF}")
    a.e(f"v_mov_b32 {v(vt0)}, 0")
    for i in range(n):
        a.e(f"v_mov_b32 {v(vt1)}, {s(PROF_S0+i)}")
        a.e(f"buffer_store_dword {v(vt1)}, {v(vt0)}, {s(ws_srd,4)}, s59 offen offset:{4*i}")
        a.e("s_nop 1")
    a.e("s_waitcnt vmcnt(0)")

def stamp_to_dbg(a, idx_list, dbg_srd, swave, wg, slot0, vt0, vt1):
    import common
    if not common.PROF: return
    L = a.newlab("nodbg")
    a.e(f"s_cmp_lg_u32 s2, {wg}")
    a.e(f"s_cbranch_scc1 {L}")
    a.e(f"s_cmp_lg_u32 {s(swave)}, 0")
    a.e(f"s_cbranch_scc1 {L}")
    a.e(f"v_mov_b32 {v(vt0)}, 0")
    for k, i in enumerate(idx_list):
        a.e(f"s_sub_u32 s59, {s(PROF_S0+i)}, {s(PROF_S0)}")
        a.e(f"v_mov_b32 {v(vt1)}, s59")
        a.e(f"buffer_store_dword {v(vt1)}, {v(vt0)}, {s(dbg_srd,4)}, 0 offen offset:{4*(slot0+k)}")
        a.e("s_nop 1")
    a.e("s_waitcnt vmcnt(0)")
    a.lab(L)
```
